```python
import torch

def _softmax(x, axis=-1):
    return torch.softmax(x, dim=axis)
def _gelu(x):
    return torch.nn.functional.gelu(x, approximate="tanh")
def _silu(x):
    return torch.nn.functional.silu(x)
def _sigmoid(x):
    return torch.sigmoid(x)
def _layernorm(x, axis=-1, eps=1e-5):
    m = x.mean(dim=axis, keepdim=True)
    v = x.var(dim=axis, keepdim=True, unbiased=False)
    return (x - m) / torch.sqrt(v + eps)
def _scatter_add(tgt, idx, src, axis=0):
    return tgt.clone().index_add_(axis, idx, src)
def _segment_sum(src, seg, n):
    out = torch.zeros((n,) + src.shape[1:], dtype=src.dtype)
    return out.index_add_(0, seg, src)
def _pad(x, pw):
    flat = tuple(v for pair in reversed(pw) for v in pair)
    return torch.nn.functional.pad(x, flat)

kernel_name = 'concat_heads__sliding_block__grouped_kv_mqa__prompt'

def setup_inputs():

    _w = (lambda a: (lambda t: t.to(torch.bfloat16) if t.is_floating_point() else t)(torch.as_tensor(a)))
    def _A_setup():
        B, S, D = 1, 2048, 640
        return {
            "x": _w((lambda *s: torch.randn(*s, dtype=torch.bfloat16) * 0.2)(B, S, D)),
            "wqkv": _w((lambda *s: torch.randn(*s, dtype=torch.bfloat16) * 0.8)(D, 3 * D)),
            "wo": _w((lambda *s: torch.randn(*s, dtype=torch.bfloat16) * 0.4)(D, D)),
        }
    _A_in = _A_setup()

    def _B_setup():
        B, S, D, H = 1, 2048, 640, 32
        Dh = D // H
        return {
            "x": _w((lambda *s: torch.randn(*s, dtype=torch.bfloat16) * 0.1)(B, S, D)),
            "wq": _w((lambda *s: torch.randn(*s, dtype=torch.bfloat16) * 0.8)(D, H * Dh)),
            "wk": _w((lambda *s: torch.randn(*s, dtype=torch.bfloat16) * 0.8)(D, Dh)),
            "wv": _w((lambda *s: torch.randn(*s, dtype=torch.bfloat16) * 0.8)(D, Dh)),
            "wo": _w((lambda *s: torch.randn(*s, dtype=torch.bfloat16) * 0.8)(H * Dh, D)),
        }
    _B_in = _B_setup()

    return {
        "A_x": _A_in["x"],
        "A_wqkv": _A_in["wqkv"],
        "A_wo": _A_in["wo"],
        "B_x": _B_in["x"],
        "B_wq": _B_in["wq"],
        "B_wk": _B_in["wk"],
        "B_wv": _B_in["wv"],
        "B_wo": _B_in["wo"],
    }

def reference(A_x, A_wqkv, A_wo, B_x, B_wq, B_wk, B_wv, B_wo):
    def _A_ref(x, wqkv, wo):
        B, S, D = x.shape
        H = 32; Dh = D // H; W = 256
        qkv = (lambda x, *d: x.permute(*d))((x @ wqkv).reshape(B, S, 3, H, Dh), 2, 0, 3, 1, 4)
        q, k, v = qkv[0], qkv[1], qkv[2]
        scores = torch.einsum("bhqd,bhkd->bhqk", q, k) * (Dh ** -0.5)
        idx = torch.arange(S)
        mask = (idx[:, None] - idx[None, :] >= 0) & (idx[:, None] - idx[None, :] < W)
        scores = torch.where(mask[None, None], scores, -1e9)
        p = _softmax(scores, axis=-1)
        o = torch.einsum("bhqk,bhkd->bhqd", p, v)
        return (lambda x, *d: x.permute(*d))(o, 0, 2, 1, 3).reshape(B, S, D) @ wo

    def _B_ref(x, wq, wk, wv, wo):
        B, S, D = x.shape
        H = 32
        Dh = D // H
        q = (lambda x, *d: x.permute(*d))((x @ wq).reshape(B, S, H, Dh), 0, 2, 1, 3)
        k = x @ wk
        v = x @ wv
        scores = torch.einsum("bhqd,bkd->bhqk", q, k) * (Dh ** -0.5)
        p = _softmax(scores, axis=-1)
        o = torch.einsum("bhqk,bkd->bhqd", p, v)
        return (lambda x, *d: x.permute(*d))(o, 0, 2, 1, 3).reshape(B, S, H * Dh) @ wo

    a = _A_ref(A_x, A_wqkv, A_wo)
    b = _B_ref(B_x, B_wq, B_wk, B_wv, B_wo)
    return torch.concatenate([a, b], axis=-1)
```

```python
from mb import run
def rep(f, n): return "\n".join(f(i) for i in range(n))
base = "\n".join(f"    v_mov_b32 v{i}, 0" for i in range(4, 128)) + """
    v_lshrrev_b32 v1, 6, v0
    s_nop 0
    v_readfirstlane_b32 s21, v1
    v_and_b32 v0, 63, v0
    v_bfe_u32 v1, v0, 2, 2      ; r
    v_lshrrev_b32 v2, 5, v0     ; h
    v_bfe_u32 v3, v0, 4, 1
    v_lshlrev_b32 v3, 2, v3
    v_and_b32 v9, 3, v0
    v_add_u32 v3, v3, v9        ; quad
"""
fin = "\n  v_mov_b32 v0, 0\n".replace("v_mov_b32 v0, 0", "s_lshl_b32 s22, s21, 6\n v_add_u32 v0, s22, v0")
pat = {}
pat["wq pitch160 interleaved"] = ("""
    v_min_u32 v9, 4, v3
    v_lshlrev_b32 v9, 3, v9
    v_lshlrev_b32 v10, 2, v2
    v_add_u32 v10, v10, v1
    v_mul_u32_u24 v10, 320, v10
    s_and_b32 s22, s21, 3
    s_mul_i32 s22, s22, 40
    v_add3_u32 v8, v10, v9, s22
""", lambda i: f"ds_read_b64_tr_b16 v[{16+2*i}:{17+2*i}], v8 offset:{(16*(i//2)+i%2)*160}")
pat["tr linear 8B*lane"] = ("v_lshlrev_b32 v8, 3, v0\n", lambda i: f"ds_read_b64_tr_b16 v[{16+2*i}:{17+2*i}], v8 offset:{i*512}")
pat["b64 linear"] = ("v_lshlrev_b32 v8, 3, v0\n", lambda i: f"ds_read_b64 v[{16+2*i}:{17+2*i}], v8 offset:{i*512}")
pat["b128 linear"] = ("v_lshlrev_b32 v8, 4, v0\n", lambda i: f"ds_read_b128 v[{16+4*i}:{19+4*i}], v8 offset:{i*1024}")
pat["b128 x swizzle"] = ("""
    v_and_b32 v9, 31, v0
    v_bfe_u32 v10, v9, 1, 3
    v_xor_b32 v10, v10, v2
    v_lshlrev_b32 v10, 4, v10
    v_lshl_add_u32 v8, v9, 7, v10
""", lambda i: f"ds_read_b128 v[{16+4*i}:{19+4*i}], v8 offset:{(i%2)*4096}")
pat["WA tileX"] = ("""
    v_lshlrev_b32 v10, 1, v1
    v_add_u32 v10, v10, v2
    v_mul_u32_u24 v10, 480, v10
    v_lshlrev_b32 v9, 3, v3
    v_add_u32 v8, v10, v9
""", lambda i: f"ds_read_b64_tr_b16 v[{16+2*i}:{17+2*i}], v8 offset:{(16*(i//2)+i%2)*240}")
pat["wo pitch160"] = ("""
    v_lshrrev_b32 v9, 2, v0
    v_mul_u32_u24 v9, 160, v9
    v_and_b32 v10, 3, v0
    v_lshl_add_u32 v8, v10, 3, v9
""", lambda i: f"ds_read_b64_tr_b16 v[{16+2*i}:{17+2*i}], v8 offset:{(i%2)*2560+(i//2)*32}")
pat["tr 4rows x 64B pitch64"] = ("""
    v_lshlrev_b32 v9, 2, v2
    v_add_u32 v9, v9, v1
    v_lshlrev_b32 v9, 6, v9
    v_lshl_add_u32 v8, v3, 3, v9
""", lambda i: f"ds_read_b64_tr_b16 v[{16+2*i}:{17+2*i}], v8 offset:{i*512}")
pat["tr 16-lane grp: 4rows x 32B pitch32 (grp 128B)"] = ("""
    v_lshlrev_b32 v8, 3, v0
""", lambda i: f"ds_read_b64_tr_b16 v[{16+2*i}:{17+2*i}], v8 offset:{i*512}")
for nm,(ini,f) in pat.items():
    for block in [256,512]:
        run(nm+" x8", rep(f,8)+"\ns_waitcnt lgkmcnt(4)", block, nvgpr=128, init=base+ini+fin, lds=32768, unroll=8)
```

```python
from runasm import *
from runasm import _hip
import ctypes
S=[64,96]; O=128; NM=144; Q16=4; Q4=8; IDX=10; KA=12; KB=16; K4=20; V=[24,28,32,36]; AK=44; AK4=45; AV=46
def it(p, off, v):
    cur=S[p]; nxt=S[1-p]
    C = f"v[{NM}:{NM+15}]" if "c0" not in v else "0"
    E=lambda i: f"v_exp_f32 v{cur+i}, v{cur+i}" if "noexp" not in v else f"s_nop 1"
    Es=lambda a,b: [E(i) for i in range(a,b)]
    M0=f"v_mfma_f32_32x32x16_bf16 v[{nxt}:{nxt+15}], v[{KA}:{KA+3}], v[{Q16}:{Q16+3}], {C}"
    M1=f"v_mfma_f32_32x32x16_bf16 v[{nxt+16}:{nxt+31}], v[{KB}:{KB+3}], v[{Q16}:{Q16+3}], {C}"
    B2=f"v_mfma_f32_32x32x4_2b_bf16 v[{nxt}:{nxt+31}], v[{K4}:{K4+1}], v[{Q4}:{Q4+1}], v[{nxt}:{nxt+31}]"
    SM=lambda j,base: f"v_smfmac_f32_32x32x32_bf16 v[{O}:{O+15}], v[{V[j]}:{V[j]+3}], v[{base+8*j}:{base+8*j+7}], v{IDX}"
    if "nopv" in v: SM=lambda j,base: "s_nop 0"
    if "noqk" in v: M0=M1=B2="s_nop 0"
    if "nob2" in v: B2="s_nop 0"
    RKA=f"ds_read_b128 v[{KA}:{KA+3}], v{AK} offset:{off}"
    RKB=f"ds_read_b128 v[{KB}:{KB+3}], v{AK} offset:{off+1024}"
    RK4=f"ds_read_b64 v[{K4}:{K4+1}], v{AK4} offset:{off+2048}"
    RV=lambda j: f"ds_read_b128 v[{V[j]}:{V[j]+3}], v{AV} offset:{off+2560+672*j}"
    if "nolds" in v:
        RKA=RKB=RK4="s_nop 0"; RV=lambda j:"s_nop 0"
    W=lambda n: f"s_waitcnt lgkmcnt({n})"
    if "wide" in v:
        O2=168
        M1=f"v_mfma_f32_32x32x16_bf16 v[{nxt+16}:{nxt+31}], v[{KA}:{KA+3}], v[48:51], {C}"
        SMw=lambda j,base,o: f"v_smfmac_f32_32x32x32_bf16 v[{o}:{o+15}], v[{V[j%2]}:{V[j%2]+3}], v[{base+8*j}:{base+8*j+7}], v{IDX}"
        V2=lambda j: V[2+j]
        SMw=lambda j,base,par: f"v_smfmac_f32_32x32x32_bf16 v[{(O if j<2 else O2)}:{(O if j<2 else O2)+15}], v[{V[2*par+j%2]}:{V[2*par+j%2]+3}], v[{base+8*j}:{base+8*j+7}], v{IDX}"
        RVw=lambda j,par: f"ds_read_b128 v[{V[2*par+j]}:{V[2*par+j]+3}], v{AV} offset:{off+2560+672*j}"
        L=[W(2),M0]+Es(0,3)+[SMw(3,nxt,1-p), RVw(0,1-p), RVw(1,1-p)]+Es(3,6)+[M1, RKA]+Es(6,10)+[W(3),SMw(0,cur,p)]+Es(10,14)+[B2,RK4]+Es(14,22)+[SMw(1,cur,p)]+Es(22,26)+[SMw(2,cur,p)]+Es(26,32)
    elif "x8" in v:
        K4b=22
        X0=f"v_mfma_f32_32x32x8_bf16 v[{nxt}:{nxt+15}], v[{K4}:{K4+1}], v[{Q4}:{Q4+1}], v[{nxt}:{nxt+15}]"
        X1=f"v_mfma_f32_32x32x8_bf16 v[{nxt+16}:{nxt+31}], v[{K4b}:{K4b+1}], v[{Q4}:{Q4+1}], v[{nxt+16}:{nxt+31}]"
        RK44=f"ds_read_b128 v[{K4}:{K4+3}], v{AK} offset:{off+2048}"
        L=[W(3),M0,RKA]+Es(0,4)+[X0]+Es(4,8)+[SM(3,nxt),RV(3)]+Es(8,12)+[W(3),SM(0,cur),RV(0)]+Es(12,16)+[M1,RKB]+Es(16,20)+[X1,RK44]+Es(20,24)+[W(4),SM(1,cur),RV(1)]+Es(24,28)+[SM(2,cur),RV(2)]+Es(28,32)
    elif "gemm32" in v:
        L=[]
        for j in range(4):
            L+=[W(4),f"v_mfma_f32_32x32x16_bf16 v[64:79], v[{V[j]}:{V[j]+3}], v[{KA}:{KA+3}], v[64:79]", f"v_mfma_f32_32x32x16_bf16 v[80:95], v[{V[j]}:{V[j]+3}], v[{KB}:{KB+3}], v[80:95]", f"ds_read_b128 v[{V[j]}:{V[j]+3}], v{AK} offset:{off+1024*j}"]
            if j==1: L+=[RKA]
            if j==3: L+=[RKB]
    elif "gemm16" in v:
        L=[]
        for j in range(4):
            L+=[W(4)]
            for q in range(4): L+=[f"v_mfma_f32_16x16x32_bf16 v[{64+16*j+4*q}:{67+16*j+4*q}], v[{V[j]}:{V[j]+3}], v[{(KA,KB,Q16,48)[q]}:{(KA,KB,Q16,48)[q]+3}], v[{64+16*j+4*q}:{67+16*j+4*q}]"]
            L+=[f"ds_read_b128 v[{V[j]}:{V[j]+3}], v{AK} offset:{off+1024*j}"]
            if j==1: L+=[RKA]
            if j==3: L+=[RKB]
    elif "dense" in v:
        P=160
        CV=lambda j: [f"v_cvt_pk_bf16_f32 v{P+4*(j%2)+i}, v{cur+8*j+2*i}, v{cur+8*j+2*i+1}" for i in range(4)]
        MD=lambda j: f"v_mfma_f32_32x32x16_bf16 v[{O}:{O+15}], v[{V[j]}:{V[j]+3}], v[{P+4*(j%2)}:{P+4*(j%2)+3}], v[{O}:{O+15}]"
        L=[W(4),M0, RKA]+Es(0,6)+[M1, RKB]+Es(6,9)+CV(0)+Es(9,11)+[W(4),MD(0),RV(0)]+Es(11,14)+[B2,RK4]+Es(14,17)+CV(1)+Es(17,22)+[MD(1),RV(1)]+Es(22,25)+CV(2)+Es(25,27)+[W(4),MD(2),RV(2)]+Es(27,32)+["s_nop 0"]+CV(3)+["s_nop 1",MD(3),RV(3)]
    else:
        L=[W(4),M0, RKA]+Es(0,3)+[SM(3,nxt), RV(3)]+Es(3,6)+[M1, RKB]+Es(6,10)+[W(5),SM(0,cur),RV(0)]+Es(10,14)+[B2,RK4]+Es(14,22)+[W(5),SM(1,cur),RV(1)]+Es(22,26)+[SM(2,cur),RV(2)]+Es(26,32)
    return "\n".join(L)+"\n"
def make(v, iters, idle=0):
    b = srd(4,0,65536) + srd(8,1,256*512)
    b += "".join(f"    v_mov_b32 v{i}, 0\n" for i in range(4,192))
    b += f"""
    v_lshlrev_b32 v1, 4, v0
    buffer_load_dwordx4 v[64:67], v1, s[4:7], 0 offen
    v_add_u32 v2, 8192, v1
    buffer_load_dwordx4 v[68:71], v2, s[4:7], 0 offen
    v_add_u32 v3, 16384, v1
    buffer_load_dwordx4 v[72:75], v3, s[4:7], 0 offen
    v_add_u32 v47, 24576, v1
    buffer_load_dwordx4 v[{Q16}:{Q16+3}], v47, s[4:7], 0 offen
    buffer_load_dwordx2 v[{Q4}:{Q4+1}], v47, s[4:7], 0 offen offset:16
    buffer_load_dwordx4 v[48:51], v47, s[4:7], 0 offen offset:32
    s_waitcnt vmcnt(0)
    ds_write_b128 v1, v[64:67]
    ds_write_b128 v2, v[68:71]
    ds_write_b128 v3, v[72:75]
    v_mov_b32 v64, 0
    v_mov_b32 v65, 0
    v_mov_b32 v66, 0
    v_mov_b32 v67, 0
    ds_write_b128 v47, v[64:67]
    s_waitcnt lgkmcnt(0)
    v_mov_b32 v{IDX}, 0xdddddddd
    v_and_b32 v2, 63, v0
    v_lshlrev_b32 v{AK}, 4, v2
    v_lshlrev_b32 v{AK4}, 3, v2
    v_and_b32 v3, 31, v2
    v_cmp_lt_u32 s[30:31], 20, v3
    v_lshlrev_b32 v3, 4, v3
    v_lshrrev_b32 v2, 5, v2
    v_mul_u32_u24 v2, 336, v2
    v_add_u32 v{AV}, v2, v3
"""
    b += "".join(f"    v_mov_b32 v{NM+i}, 0xc1200000\n" for i in range(16))
    if "zjunk" in v:
        b += f"    v_mov_b32 v2, 24576\n    v_cndmask_b32 v{AV}, v{AV}, v2, s[30:31]\n"
        b += "    v_lshlrev_b32 v1, 4, v0\n" + "".join(f"    v_add_u32 v2, {24576+8192*i}, v1\n    ds_write_b128 v2, v[64:67]\n" for i in range(4)) + "    s_waitcnt lgkmcnt(0)\n"
    b += f"""    s_barrier
    s_mov_b32 s20, {iters}
    s_mov_b32 s23, 0
""" + "    s_sleep 37\n"*idle + f"""    s_memrealtime s[40:41]
    s_memtime s[12:13]
    s_waitcnt lgkmcnt(0)
L_loop:
"""
    b += it(0,0,v)+it(1,5248,v)+it(0,2*5248,v)+it(1,3*5248,v)
    b += """    s_memrealtime s[44:45]
    s_memtime s[46:47]
    s_waitcnt lgkmcnt(0)
    s_sub_u32 s44, s44, s40
    s_sub_u32 s46, s46, s12
    s_nop 3
    s_mov_b32 m0, s23
    s_nop 3
    v_writelane_b32 v190, s44, m0
    v_writelane_b32 v191, s46, m0
    s_add_u32 s23, s23, 1
    s_sub_u32 s20, s20, 1
    s_cmp_lg_u32 s20, 0
    s_cbranch_scc1 L_loop
    s_barrier
    s_memrealtime s[42:43]
    s_memtime s[14:15]
    s_waitcnt lgkmcnt(0)
    s_sub_u32 s14, s14, s12
    s_sub_u32 s42, s42, s40
    v_mov_b32 v4, s14
    v_mov_b32 v5, s42
    s_lshl_b32 s3, s2, 9
    v_and_b32 v1, 63, v0
    v_lshlrev_b32 v1, 3, v1
    v_add_u32 v1, s3, v1
    buffer_store_dwordx2 v[190:191], v1, s[8:11], 0 offen
    s_waitcnt vmcnt(0)
"""
    return b
gpu = os.path.exists("/dev/kfd")
if gpu:
    rng = np.random.default_rng(0)
    data = f2bf((rng.standard_normal(32768)*1.2).astype(np.float32))
    dr = DeviceBuffer.from_numpy(data); dz = DeviceBuffer.from_numpy(np.zeros(32768,np.uint16))
    st = DeviceBuffer.from_numpy(np.zeros(256*8*4,np.uint32))
if gpu: st = DeviceBuffer.from_numpy(np.zeros(256*128,np.uint32))
for v,idle in [("zjunk",0),("zjunk",5),("zjunk",20)]:
    iters=48
    k = build(make(v, iters, idle), 2, grid=256, block=512, lds=65536, nvgpr=192, tag="pw")
    if k is None: continue
    for rep in range(3):
        k.launch((256,1,1),(512,1,1),pack_ptr_kernargs([dr.ptr, st.ptr]),65536); sync()
        o = st.to_numpy(np.uint32,(256,64,2)).astype(np.float64)[:,:iters].mean(0)
        t = np.concatenate([[0],o[:,0]/100]); c = np.concatenate([[0],o[:,1]])
        clk = [(c[i+4]-c[i])/(t[i+4]-t[i])/1000 for i in range(0,iters-3,4)]
        print(v, "idle us", idle, "clock per 4 outer iters:", " ".join(f"{x:.2f}" for x in clk), "total us %.1f"%t[-1])
    k.unload()
```

```python
import re

REG_RE = re.compile(r"^(-|abs\()?([vs])(\d+)\)?$")
RANGE_RE = re.compile(r"^([vs])\[(\d+):(\d+)\]$")


def regs_of(op):
    op = op.strip()
    m = RANGE_RE.match(op)
    if m:
        return [(m.group(1), i) for i in range(int(m.group(2)), int(m.group(3)) + 1)]
    m = REG_RE.match(op)
    if m:
        return [(m.group(2), int(m.group(3)))]
    if op == "vcc":
        return [("s", "vcc")]
    if op in ("vcc_lo", "vcc_hi"):
        return [("s", "vcc")]
    if op == "exec":
        return [("s", "exec")]
    if op == "m0":
        return [("s", "m0")]
    return []


def vr(a, n=1):
    return f"v{a}" if n == 1 else f"v[{a}:{a+n-1}]"


def sr(a, n=1):
    return f"s{a}" if n == 1 else f"s[{a}:{a+n-1}]"


TRANS = ("v_exp_f32", "v_log_f32", "v_rcp_f32", "v_rsq_f32", "v_sqrt_f32", "v_rcp_iflag_f32")
PASSES = {
    "v_mfma_f32_32x32x16_bf16": 8,
    "v_mfma_f32_32x32x8_bf16": 8,
    "v_mfma_f32_16x16x32_bf16": 4,
    "v_mfma_f32_32x32x4_2b_bf16": 16,
    "v_smfmac_f32_32x32x32_bf16": 8,
}


class Ins:
    def __init__(self, text):
        self.text = text
        t = text.split(";")[0].strip()
        self.label = t.endswith(":")
        self.op = ""
        self.kind = "none"
        self.w = []
        self.r = []
        self.srcc = []
        self.srcab = []
        self.states = 1
        if not t or self.label or t.startswith("."):
            self.states = 0
            return
        parts = t.split(None, 1)
        self.op = parts[0]
        rest = parts[1] if len(parts) > 1 else ""
        ops = [o.strip() for o in re.split(r",(?![^\[]*\])", rest)] if rest else []
        if ops:
            last = ops[-1].split()
            mods = last[1:]
            ops[-1] = last[0] if last else ""
        else:
            mods = []
        self.mods = mods
        op = self.op
        R = lambda i: regs_of(ops[i]) if i < len(ops) else []
        allr = lambda a: [x for i in range(a, len(ops)) for x in R(i)]
        if op == "s_nop":
            self.kind = "nop"
            self.states = int(ops[0]) + 1
        elif op in PASSES:
            self.kind = "mfma"
            self.passes = PASSES[op]
            self.w = R(0)
            self.srcab = R(1) + R(2)
            if op.startswith("v_smfmac"):
                self.srcc = R(0)
                self.srcab += R(3)
            else:
                self.srcc = R(3)
            self.r = self.srcab + self.srcc
        elif op.startswith("v_"):
            self.kind = "trans" if op in TRANS else "valu"
            if op.startswith("v_permlane32_swap") or op.startswith("v_permlane16_swap"):
                self.w = R(0) + R(1)
                self.r = R(0) + R(1)
            elif op.startswith("v_cmp"):
                self.w = R(0)
                self.r = allr(1)
            elif op.startswith("v_fmac") or op.startswith("v_writelane"):
                self.w = R(0)
                self.r = R(0) + allr(1)
            elif op.startswith("v_add_co") or op.startswith("v_addc_co"):
                self.w = R(0) + R(1)
                self.r = allr(2)
            else:
                self.w = R(0)
                self.r = allr(1)
        elif op.startswith("ds_read"):
            self.kind = "ds"
            self.w = R(0)
            self.r = R(1)
        elif op.startswith("ds_write") or op.startswith("ds_add") or op.startswith("ds_or"):
            self.kind = "ds"
            self.r = allr(0)
        elif op.startswith("buffer_load"):
            self.kind = "vmem"
            if "lds" in mods:
                self.r = allr(0) + [("s", "m0")]
                self.ldsdma = True
            else:
                self.w = R(0)
                self.r = allr(1)
        elif op.startswith("buffer_store") or op.startswith("buffer_atomic"):
            self.kind = "vmem"
            self.r = allr(0)
            self.data = R(0)
        elif op.startswith("s_load") or op.startswith("s_memtime") or op.startswith("s_memrealtime"):
            self.kind = "smem"
            self.w = R(0)
            self.r = allr(1)
        elif op.startswith("s_cmp") or op.startswith("s_cbranch") or op.startswith("s_branch") or op in (
            "s_waitcnt", "s_barrier", "s_endpgm", "s_setprio", "s_sleep"):
            self.kind = "salu"
            self.r = allr(0) if op.startswith("s_cmp") else []
        elif op.startswith("s_"):
            self.kind = "salu"
            self.w = R(0)
            self.r = allr(1)
            if "saveexec" in op:
                self.w += [("s", "exec")]
        else:
            raise ValueError("unknown instruction: " + text)


def check_hazards(lines):
    ins = [Ins(l) for l in lines]
    probs = []
    n = len(ins)
    for i, a in enumerate(ins):
        if a.states == 0 or a.kind in ("nop",):
            continue
        need_max = 21
        dist = 0
        aw = set(a.w)
        awv = {x for x in aw if x[0] == "v"}
        aws = {x for x in aw if x[0] == "s"}
        for j in range(i + 1, n):
            b = ins[j]
            if b.states == 0:
                continue
            if dist >= need_max:
                break
            br, bw = set(b.r), set(b.w)
            need = 0
            why = ""
            if a.kind in ("valu", "trans"):
                if b.kind == "mfma" and awv & br:
                    need, why = 2, "VALU->MFMA operand"
                elif b.op.startswith("v_permlane") and awv & br:
                    need, why = 2, "VALU->permlane"
                elif (b.op.startswith("v_readfirstlane") or b.op.startswith("v_readlane")) and awv & br:
                    need, why = 1, "VALU->readlane"
                elif a.kind == "trans" and b.kind == "valu" and awv & br:
                    need, why = 1, "trans->VALU"
                if aws:
                    if b.kind == "vmem" and aws & br:
                        need, why = max(need, 5), "VALU sgpr->VMEM"
                    elif b.kind in ("valu", "trans") and aws & br:
                        need, why = max(need, 2), "VALU sgpr->VALU"
                    elif b.kind == "salu" and aws & br:
                        need, why = max(need, 1), "VALU sgpr->SALU (pad)"
                    elif b.op in ("s_cbranch_vccz", "s_cbranch_vccnz") and ("s", "vcc") in aws:
                        need, why = max(need, 1), "vcc->branch (pad)"
            elif a.kind == "mfma":
                p = a.passes
                if b.kind == "mfma":
                    if awv & set(b.srcab):
                        need, why = p + 4, "MFMA D->A/B"
                    elif awv & set(b.srcc):
                        if b.srcc == a.w and b.passes == p:
                            need = 0
                        else:
                            need, why = p + 2, "MFMA D->C overlap"
                    elif awv & bw:
                        need, why = p + 2, "MFMA D->D WAW (conservative)"
                        if b.w == a.w and b.passes == p:
                            need = 0
                elif b.kind in ("valu", "trans") and awv & (br | bw):
                    need, why = p + 4, "MFMA D->VALU"
                elif b.kind in ("ds", "vmem") and awv & (br | bw):
                    need, why = p + 4, "MFMA D->mem"
                if b.kind in ("valu", "trans") and set(a.srcc) & bw:
                    need2 = p - 1
                    if need2 > need:
                        need, why = need2, "MFMA C WAR"
            elif a.kind == "salu":
                if ("s", "m0") in aw and getattr(b, "ldsdma", False):
                    need, why = 1, "m0->LDS DMA"
            elif a.kind == "vmem" and getattr(a, "data", None) and len(a.data) >= 3:
                if set(a.data) & bw and b.kind in ("valu", "trans"):
                    need, why = 2, "wide store data WAR"
                elif set(a.data) & bw:
                    need, why = 1, "wide store data WAR"
            if need > dist:
                probs.append(f"line {i}: '{a.text.strip()}' -> line {j}: '{b.text.strip()}' {why}: need {need} have {dist}")
            if b.op in ("s_branch", "s_endpgm"):
                break
            dist += b.states
    return probs


class Gen:
    def __init__(self):
        self.lines = []
        self.lq = []
        self.vq = []
        self.nlab = 0

    def __call__(self, text):
        for t in text.split("\n"):
            t = t.rstrip()
            if not t.strip():
                continue
            self.emit(t.strip())

    def emit(self, t, tag=None, cls=None):
        ins = Ins(t)
        if ins.states and ins.kind != "nop":
            touched = set(ins.r) | set(ins.w)
            for k, q in enumerate(self.lq):
                if touched & q:
                    raise RuntimeError(f"'{t}' touches regs of outstanding LDS op #{k} of {len(self.lq)}")
            for k, (q, c) in enumerate(self.vq):
                if touched & q:
                    raise RuntimeError(f"'{t}' touches regs of outstanding VMEM op #{k} of {len(self.vq)}")
        if ins.kind == "ds":
            self.lq.append(set(ins.w) | ({tag} if tag else set()))
        elif ins.kind == "vmem":
            self.vq.append((set(ins.w) | ({tag} if tag else set()), cls))
        elif ins.op == "s_waitcnt":
            m = re.search(r"lgkmcnt\((\d+)\)", t)
            if m:
                n = int(m.group(1))
                self.lq = self.lq[len(self.lq) - n:] if n < len(self.lq) else self.lq
                if n == 0:
                    self.lq = []
            m = re.search(r"vmcnt\((\d+)\)", t)
            if m and cls != "nocount":
                n = int(m.group(1))
                k, cnt = len(self.vq), 0
                while k > 0 and cnt < n:
                    k -= 1
                    if self.vq[k][1] is None:
                        cnt += 1
                self.vq = self.vq[k:]
        self.lines.append(("" if ins.label else "    ") + t)

    def label(self, base="L"):
        self.nlab += 1
        return f"{base}_{self.nlab}"

    @staticmethod
    def _keys(items):
        keys = set()
        for it in items:
            r = regs_of(it) if isinstance(it, str) else []
            keys |= set(r) if r else {it}
        return keys

    def lwait(self, *items):
        keys = self._keys(items)
        last = -1
        for k, q in enumerate(self.lq):
            if q & keys:
                last = k
        if last < 0:
            return False
        n = len(self.lq) - 1 - last
        assert n <= 15, "lgkmcnt overflow"
        self.emit(f"s_waitcnt lgkmcnt({n})")
        return True

    def vwait(self, *items, skipcond=None):
        keys = self._keys(items)
        last = -1
        for k, (q, c) in enumerate(self.vq):
            if q & keys:
                last = k
        if last < 0:
            return False
        younger = self.vq[last + 1:]
        tcls = {c for q, c in self.vq if q & keys}
        own = tcls if None not in tcls else set()
        n_min = len([1 for q, c in younger if c is None or c in own])
        n_all = n_min + len([1 for q, c in younger if c == "opt" and c not in own])
        assert n_all <= 63
        self.emit(f"s_waitcnt vmcnt({n_all})", cls="nocount")
        self.vq = younger
        if n_min < n_all:
            assert skipcond is not None
            lab = self.label("Lw")
            self.emit(skipcond[0])
            self.emit(f"{skipcond[1]} {lab}")
            self.emit(f"s_waitcnt vmcnt({n_min})", cls="nocount")
            self.emit(f"{lab}:")
        return True

    def text(self):
        return "\n".join(self.lines) + "\n"
```

```python
import copy
import struct
import sys

from asmlib import Gen, check_hazards, sr, vr

NAME = "concat_heads__sliding_block__grouped_kv_mqa__prompt"
CSCALE = struct.unpack("<I", struct.pack("<f", 20 ** -0.5 * 1.4426950408889634))[0]
BIG = struct.unpack("<I", struct.pack("<f", 1e30))[0]
NBIG = struct.unpack("<I", struct.pack("<f", -1e30))[0]
LMAX = struct.unpack("<I", struct.pack("<f", 2.0 ** 64))[0]

WS_EPOCH = 0
WS_F1 = 0x1000
WS_F2 = 0x10000
WS_KVB = 0x20000
WS_KVA = 0x80000
WS_QA = 0x680000
WS_OB = 0x900000
WS_OA = 0xB80000
WS_WO = 0xE00000
WS_STAMP = 0x1000000
WS_SIZE = 0x1100000
KPITCH = 2880
KHEAD = 34816
OOB = 0x7F000000

SLOT = 32768
RING = [0, 21504, 43008]
L_FLAG = 64512
L_KVA = 65536
L_TAIL = 139264
LDS_BYTES = 163840

SRD_XA, SRD_WQKV, SRD_WOA, SRD_XB, SRD_WQ, SRD_WOB, SRD_OUT, SRD_WS, SRD_S2 = 20, 24, 28, 32, 36, 44, 48, 52, 56
S_W, S_RBA, S_HP, S_RBB, S_HG, S_TAG, S_WK, S_STEP2, S_SOFF, S_KC = 60, 61, 62, 63, 64, 65, 66, 67, 68, 69
S_T0, S_T1, S_T2, S_T3, S_T4, S_T5 = 70, 71, 72, 73, 74, 75
S_ISV, S_RHKV, S_TSTART, S_PASS, S_SPIN, S_U, S_UK, S_Q = 76, 77, 78, 79, 80, 81, 82, 83
S_M0E, S_CT, S_TP, S_RPM, S_RPD, S_WOG = 40, 43, 41, 18, 19, 42
S_KG, S_KL = 8, 9
S_KCS = 8
S_UP = 84
S_M2 = 86
S_M3 = 88
S_C = 90
S_STMP = 92
S_ST0 = 8

V_L = 0
QB16, QB4, QA4, QA16, IDX, V_TAG = 4, 8, 10, 12, 16, 17
VOB, VOB4, VOA, VOA4 = 18, 19, 20, 21
VX, VWQ1, VS2, VWA0, VWA1, VL16, VWOM, VWOE, VPOLL, VPA = 22, 23, 24, 25, 26, 27, 28, 29, 30, 31
MASKD, MASKF = 32, 48
AXB, AWQ, AXK, AWK, AWX, AWY, AXA = 64, 68, 70, 74, 75, 76, 78
ACQ, ACK, AX, AY, FB = 84, 112, 120, 136, 184
RPK = 236
EPA = [69, 70, 71, 72, 73, 74, 77, 82]
T0, T1, T2, T3, T4, SENT = 240, 241, 242, 243, 244, 248


class K:
    def __init__(self, opt):
        self.g = Gen()
        self.opt = opt
        self.nstamp = 0
        self.names = {}

    def stamp(self, name=''):
        if not self.opt.get("stamps"):
            return
        g = self.g
        assert self.nstamp < 60
        ins = "s_memrealtime" if self.opt.get("stamps") == 2 else "s_memtime"
        g.lines.append(f"    {ins} s[{S_STMP}:{S_STMP+1}]")
        g.emit("s_waitcnt lgkmcnt(0)")
        g(f"v_writelane_b32 v255, s{S_STMP}, {self.nstamp}")
        self.names[self.nstamp] = name
        self.nstamp += 1

    def dma(self, srd, vaddr, soff, lds, tag=None, cls=None, sc1=False, wavebase=True):
        g = self.g
        if wavebase:
            g(f"s_add_u32 m0, s{S_WK}, {lds}")
        else:
            g(f"s_mov_b32 m0, {lds}")
        if isinstance(soff, int):
            g(f"s_mov_b32 s{S_SOFF}, {soff}")
            so = f"s{S_SOFF}"
        else:
            g("s_nop 0")
            so = soff
        g.emit(f"buffer_load_dwordx4 {vr(vaddr)}, {sr(srd,4)}, {so} offen{' sc1' if sc1 else ' nt' if self.opt.get('dmant') else ''} lds", tag=tag, cls=cls)

    def div_small(self, dst, src, d, tmp_s):
        g = self.g
        mul = {10: 6554, 15: 4370}[d]
        for u in range(1024):
            assert (u * mul) >> 16 == u // d
        g(f"v_mul_u32_u24 {vr(dst)}, {mul}, {vr(src)}")
        g(f"v_lshrrev_b32 {vr(dst)}, 16, {vr(dst)}")

    def prefetch(self, which):
        g = self.g
        nt = " nt" if self.opt.get("pfnt") else ""
        end = g.label("Lpf")
        g(f"""
        s_lshr_b32 s{S_T0}, s2, 3
        s_and_b32 s{S_T1}, s2, 3
        s_bfe_u32 s{S_T2}, s2, 0x10002
        s_lshl_b32 s{S_T3}, s{S_W}, 6
        v_add_u32 v1, s{S_T3}, v0
        """)

        def xrows(srd):
            g(f"""
            s_lshl_b32 s{S_T1}, s{S_T1}, 5
            s_add_u32 s{S_T1}, s{S_T1}, s{S_T0}
            s_mul_i32 s{S_T1}, s{S_T1}, {16*1280}
            v_min_u32 v1, 159, v1
            v_lshlrev_b32 v1, 7, v1
            """)
            g.emit(f"buffer_load_dword v254, v1, {sr(srd,4)}, s{S_T1} offen{nt}", cls="extra", tag="pf")

        def wcols(srd, first, parts, pitch):
            n = 100 * parts
            g(f"v_subrev_u32 v1, {first*64}, v1\nv_min_u32 v1, {n-1}, v1\nv_mul_u32_u24 v2, 13108, v1\nv_lshrrev_b32 v2, 16, v2")
            for u in range(n):
                assert (u * 13108) >> 16 == u // 5
            g(f"""
            v_mul_u32_u24 v3, 5, v2
            v_sub_u32 v1, v1, v3
            v_lshlrev_b32 v1, 7, v1
            v_mul_u32_u24 v2, 1280, v2
            v_add_u32 v1, v1, v2
            s_mul_i32 s{S_T0}, s{S_T0}, {20*pitch}
            s_mul_i32 s{S_T2}, s{S_T2}, 640
            s_add_u32 s{S_T0}, s{S_T0}, s{S_T2}
            """)
            g.emit(f"buffer_load_dword v254, v1, {sr(srd,4)}, s{S_T0} offen{nt}", cls="extra", tag="pf")

        if which in "AB":
            l1 = g.label("Lpf")
            g(f"s_cmp_ge_u32 s{S_W}, 3\ns_cbranch_scc1 {l1}")
            xrows(SRD_XA if which == "A" else SRD_XB)
            g(f"s_branch {end}\n{l1}:")
            g.vq = [x for x in g.vq if "pf" not in x[0]]
            if which == "A":
                wcols(SRD_WQKV, 3, 3, 3840)
            else:
                g(f"s_cmp_ge_u32 s{S_W}, 5\ns_cbranch_scc1 {end}")
                wcols(SRD_WQ, 3, 1, 1280)
        else:
            l1 = g.label("Lpf")
            g(f"s_cmp_ge_u32 s{S_W}, 2\ns_cbranch_scc1 {l1}")
            wcols(SRD_WOB, 0, 1, 1280)
            g(f"s_branch {end}\n{l1}:")
            g.vq = [x for x in g.vq if "pf" not in x[0]]
            g(f"s_cmp_ge_u32 s{S_W}, 4\ns_cbranch_scc1 {end}")
            wcols(SRD_WOA, 2, 1, 1280)
        g(f"{end}:")
        g.vq = [(q - {("v", 254)}, c) for q, c in g.vq]

    def prologue(self):
        g = self.g
        g(f"""
        s_cmp_ge_u32 s2, 256
        s_cbranch_scc1 L_end
        s_load_dwordx2 s[{SRD_XB}:{SRD_XB+1}], s[0:1], 24
        s_load_dwordx2 s[{SRD_WQ}:{SRD_WQ+1}], s[0:1], 32
        s_load_dwordx4 s[4:7], s[0:1], 40
        s_load_dwordx2 s[{SRD_WS}:{SRD_WS+1}], s[0:1], 80
        s_load_dwordx2 s[{SRD_XA}:{SRD_XA+1}], s[0:1], 0
        s_load_dwordx2 s[{SRD_WQKV}:{SRD_WQKV+1}], s[0:1], 8
        s_load_dwordx2 s[{SRD_WOA}:{SRD_WOA+1}], s[0:1], 16
        s_load_dwordx2 s[{SRD_WOB}:{SRD_WOB+1}], s[0:1], 56
        s_load_dwordx2 s[{SRD_OUT}:{SRD_OUT+1}], s[0:1], 64
        """)
        if self.opt.get("stamps"):
            g.lines.append(f"    s_memrealtime s[94:95]")
            g.lines.append(f"    s_memtime s[96:97]")
        g(f"""
        v_lshrrev_b32 v1, 6, v0
        v_and_b32 v0, 63, v0
        v_readfirstlane_b32 s{S_W}, v1
        s_and_b32 s{S_T0}, s2, 3
        s_bfe_u32 s{S_T1}, s2, 0x10002
        s_bfe_u32 s{S_T3}, s2, 0x30003
        s_lshl_b32 s{S_RBB}, s{S_T0}, 3
        s_add_u32 s{S_RBB}, s{S_RBB}, s{S_T3}
        s_lshr_b32 s{S_T4}, s2, 6
        s_lshl_b32 s{S_HG}, s{S_T1}, 2
        s_add_u32 s{S_HG}, s{S_HG}, s{S_T4}
        s_lshl_b32 s{S_WK}, s{S_W}, 10
        s_and_b32 s{S_U}, s{S_W}, 3
        s_lshl_b32 s{S_UK}, s{S_U}, 10
        s_bfe_u32 s{S_ISV}, s{S_HG}, 0x10001
        v_lshlrev_b32 {vr(VL16)}, 4, v0
        s_cmp_lt_u32 s{S_W}, 4
        s_cbranch_scc1 L_cons
        """)

    def common_setup(self):
        g = self.g
        for srd, n in ((SRD_WS, WS_SIZE), (SRD_XA, 2621440), (SRD_WQKV, 2457600), (SRD_WOA, 819200), (SRD_WOB, 819200), (SRD_OUT, 5242880)):
            g(f"s_mov_b32 s{srd+2}, {n}\ns_mov_b32 s{srd+3}, 0x20000")
        g(f"""
        s_and_b32 s{S_T0}, s2, 3
        s_bfe_u32 s{S_T1}, s2, 0x10002
        s_bfe_u32 s{S_T3}, s2, 0x20003
        s_lshl_b32 s{S_RBA}, s{S_T0}, 2
        s_add_u32 s{S_RBA}, s{S_RBA}, s{S_T3}
        s_lshr_b32 s{S_T3}, s2, 5
        s_lshl_b32 s{S_HP}, s{S_T1}, 3
        s_add_u32 s{S_HP}, s{S_HP}, s{S_T3}
        s_min_u32 s{S_CT}, s{S_HP}, 14
        s_and_b32 s{S_RHKV}, s{S_HG}, 1
        s_bfe_u32 s{S_Q}, s{S_W}, 0x10001
        s_lshl_b32 s{S_Q}, s{S_Q}, 1
        s_lshr_b32 s{S_T0}, s{S_W}, 2
        s_add_u32 s{S_Q}, s{S_Q}, s{S_T0}
        s_mov_b32 s{S_UP}, 0
        s_mov_b32 s{S_UP+1}, -1
        s_mov_b32 s{S_C}, {CSCALE}
        s_mov_b32 s{S_PASS}, 0
        s_mov_b32 s{S_SPIN}, 0x40000
        v_mov_b32 {vr(IDX)}, 0xdddddddd
        """)

    def epoch_load(self):
        g = self.g
        g(f"v_mov_b32 v1, {WS_EPOCH}")
        g.emit(f"buffer_load_dword {vr(V_TAG)}, v1, {sr(SRD_WS,4)}, 0 offen sc1")

    def epoch_tag(self):
        g = self.g
        g.vwait(vr(V_TAG))
        g(f"v_add_u32 {vr(V_TAG)}, 0x9e3779b9, {vr(V_TAG)}")

    def setup_masks(self):
        g = self.g
        g(f"""
        v_and_b32 {vr(T3)}, 31, v0
        v_lshrrev_b32 v2, 5, v0
        v_lshlrev_b32 v2, 2, v2
        v_sub_u32 {vr(T3)}, {vr(T3)}, v2
        v_mov_b32 {vr(T4)}, {NBIG}
        """)
        for r0 in range(0, 16, 2):
            for r, m in ((r0, S_M2), (r0 + 1, S_M3)):
                g(f"v_cmp_gt_i32 s[{m}:{m+1}], {8*(r//4)+r%4}, {vr(T3)}")
            g("s_nop 0")
            for r, m in ((r0, S_M2), (r0 + 1, S_M3)):
                g(f"v_cndmask_b32 {vr(MASKD+r)}, 0, {vr(T4)}, s[{m}:{m+1}]\nv_cndmask_b32 {vr(MASKF+r)}, {vr(T4)}, 0, s[{m}:{m+1}]")

    def setup_oaddr(self, isb):
        g = self.g
        vm, ve, base = (VOB, VOB4, WS_OB) if isb else (VOA, VOA4, WS_OA)
        sh = 2 if isb else 1
        g(f"""
        v_and_b32 v2, 31, v0
        v_lshlrev_b32 v2, 4, v2
        v_lshrrev_b32 v3, 5, v0
        v_lshl_add_u32 v3, v3, 9, v2
        s_and_b32 s{S_T0}, s{S_W}, {(1 << sh) - 1}
        s_lshl_b32 s{S_T1}, s{S_HG if isb else S_HP}, {sh}
        s_add_u32 s{S_T0}, s{S_T0}, s{S_T1}
        {f's_lshr_b32 s{S_T1}, s{S_W}, 2' if isb else f's_mov_b32 s{S_T1}, s{S_Q}'}
        s_lshl_b32 s{S_T2}, s{S_RBB if isb else S_RBA}, {3 - sh}
        s_add_u32 s{S_T1}, s{S_T1}, s{S_T2}
        s_mul_i32 s{S_T1}, s{S_T1}, 40960
        s_add_u32 s{S_T1}, s{S_T1}, {base}
        s_lshr_b32 s{S_T2}, s{S_T0}, 3
        s_mul_i32 s{S_T2}, s{S_T2}, {20*512}
        s_add_u32 s{S_T1}, s{S_T1}, s{S_T2}
        s_and_b32 s{S_T2}, s{S_T0}, 7
        s_lshl_b32 s{S_T2}, s{S_T2}, 10
        s_add_u32 s{S_T2}, s{S_T2}, s{S_T1}
        v_add_u32 {vr(vm)}, s{S_T2}, v3
        s_bfe_u32 s{S_T2}, s{S_T0}, 0x20001
        s_lshl_b32 s{S_T2}, s{S_T2}, 9
        s_add_u32 s{S_T1}, s{S_T1}, s{S_T2}
        s_and_b32 s{S_T2}, s{S_T0}, 1
        s_lshl_b32 s{S_T2}, s{S_T2}, 3
        s_add_u32 s{S_T1}, s{S_T1}, s{S_T2}
        s_add_u32 s{S_T1}, s{S_T1}, {16*512}
        v_add_u32 {vr(ve)}, s{S_T1}, v2
        v_mov_b32 v1, {OOB}
        v_cndmask_b32 {vr(ve)}, {vr(ve)}, v1, s[{S_UP}:{S_UP+1}]
        """)
        if isb:
            for i in range(4):
                g(f"v_mov_b32 {vr(SENT+i)}, -1")

    def sentinels(self):
        g = self.g
        for vm, ve in ((VOB, VOB4), (VOA, VOA4)):
            g.emit(f"buffer_store_dwordx4 {vr(SENT,4)}, {vr(vm)}, {sr(SRD_WS,4)}, 0 offen sc1", tag="sent")
            g.emit(f"buffer_store_dwordx2 {vr(SENT,2)}, {vr(ve)}, {sr(SRD_WS,4)}, 0 offen sc1", tag="sent")

    def setup_wa(self):
        self.g(f"""
        v_lshrrev_b32 v2, 4, v0
        v_lshlrev_b32 v3, 2, v2
        v_sub_u32 v1, v0, v3
        v_and_b32 v1, 15, v1
        v_lshlrev_b32 v1, 4, v1
        s_lshl_b32 s{S_T0}, s{S_U}, 2
        v_add_u32 v2, s{S_T0}, v2
        v_mul_u32_u24 v2, 3840, v2
        s_lshl_b32 s{S_T2}, s{S_CT}, 8
        v_add3_u32 {vr(VWA0)}, v2, v1, s{S_T2}
        """)

    def setup_wo(self):
        g = self.g
        g(f"""
        s_lshl_b32 s{S_T0}, s2, 3
        s_add_u32 s{S_T0}, s{S_T0}, s{S_W}
        s_mul_i32 s{S_T1}, s{S_T0}, 13108
        s_lshr_b32 s{S_T1}, s{S_T1}, 16
        s_mul_i32 s{S_T2}, s{S_T1}, 5
        s_sub_u32 s{S_T2}, s{S_T0}, s{S_T2}
        s_mul_i32 s{S_T3}, s{S_T1}, 3277
        s_lshr_b32 s{S_T3}, s{S_T3}, 16
        s_mul_i32 s{S_T4}, s{S_T3}, 20
        s_sub_u32 s{S_T1}, s{S_T1}, s{S_T4}
        s_lshr_b32 s{S_RPM}, s{S_T3}, 3
        s_mul_i32 s{S_RPD}, s{S_T3}, 102400
        s_and_b32 s{S_T3}, s{S_T3}, 7
        s_mul_i32 s{S_T3}, s{S_T3}, 160
        s_lshl_b32 s{S_T4}, s{S_T2}, 10
        s_add_u32 s{S_RPD}, s{S_RPD}, s{S_T4}
        s_lshl_b32 s{S_T2}, s{S_T2}, 6
        v_add_u32 v1, s{S_T2}, v0
        s_cmp_ge_u32 s{S_T1}, 10
        s_cselect_b32 s{S_T2}, 1, 0
        s_mul_i32 s{S_T4}, s{S_T2}, 19
        s_lshl_b32 s{S_T5}, s{S_T1}, 1
        s_sub_u32 s{S_T5}, s{S_T5}, s{S_T4}
        s_mul_i32 s{S_T5}, s{S_T5}, 5120
        s_add_u32 s{S_RPD}, s{S_RPD}, s{S_T5}
        s_add_u32 s{S_RPD}, s{S_RPD}, {WS_WO}
        s_mul_i32 s{S_T2}, s{S_T1}, 13108
        s_lshr_b32 s{S_T2}, s{S_T2}, 16
        s_mul_i32 s{S_T4}, s{S_T2}, 5
        s_sub_u32 s{S_T1}, s{S_T1}, s{S_T4}
        s_mul_i32 s{S_T2}, s{S_T2}, 160
        s_mul_i32 s{S_T4}, s{S_T1}, 40
        s_cmp_eq_u32 s{S_T1}, 4
        s_cselect_b64 s[{S_M2}:{S_M2+1}], -1, 0
        s_cselect_b32 s{S_T4}, 0, s{S_T4}
        s_add_u32 s{S_T2}, s{S_T2}, s{S_T4}
        s_mul_i32 s{S_T2}, s{S_T2}, 1280
        s_add_u32 s{S_T2}, s{S_T2}, s{S_T3}
        """)
        for u in range(2048):
            assert (u * 13108) >> 16 == u // 5
        for u in range(410):
            assert (u * 3277) >> 16 == u // 20
        self.div_small(2, 1, 10, None)
        g(f"""
        v_mul_u32_u24 v3, 10, v2
        v_sub_u32 v1, v1, v3
        v_lshlrev_b32 v1, 4, v1
        v_add_u32 v1, s{S_T2}, v1
        v_and_b32 v3, 3, v2
        v_bfe_u32 {vr(T0)}, v2, 4, 1
        v_bfe_u32 {vr(T1)}, v2, 2, 1
        v_bfe_u32 {vr(T2)}, v2, 3, 1
        v_bfe_u32 v2, v2, 2, 2
        v_mul_u32_u24 {vr(T2)}, 20, {vr(T2)}
        v_lshl_add_u32 {vr(T2)}, {vr(T0)}, 3, {vr(T2)}
        v_lshl_add_u32 {vr(T2)}, {vr(T1)}, 2, {vr(T2)}
        v_mul_u32_u24 v2, 40, v2
        v_mul_u32_u24 {vr(T0)}, 20, {vr(T0)}
        v_add3_u32 v2, v2, {vr(T0)}, 16
        v_cndmask_b32 v2, {vr(T2)}, v2, s[{S_M2}:{S_M2+1}]
        v_add_u32 v2, v2, v3
        v_mul_u32_u24 v2, 1280, v2
        v_add_u32 {vr(VWOM)}, v2, v1
        """)

    def repack_load(self):
        g = self.g
        la, le = g.label("Lrp"), g.label("Lrp")
        g(f"s_cmp_eq_u32 s{S_RPM}, 0\ns_cbranch_scc0 {la}")
        g.lines.append(f"    buffer_load_dwordx4 {vr(RPK,4)}, {vr(VWOM)}, {sr(SRD_WOB,4)}, 0 offen")
        g(f"s_branch {le}\n{la}:")
        g.emit(f"buffer_load_dwordx4 {vr(RPK,4)}, {vr(VWOM)}, {sr(SRD_WOA,4)}, 0 offen")
        g(f"{le}:")

    def repack_store(self):
        g = self.g
        le = g.label("Lrp")
        g.vwait(vr(RPK, 4))
        g(f"s_cmp_lt_u32 s{S_RPM}, 2\ns_cbranch_scc0 {le}")
        g.emit(f"buffer_store_dwordx4 {vr(RPK,4)}, {vr(VL16)}, {sr(SRD_WS,4)}, s{S_RPD} offen sc1", cls="extra")
        g(f"{le}:")

    def lds_addr_x(self, dst, rowblk_setup, perm):
        g = self.g
        g(rowblk_setup)
        g(f"v_and_b32 v1, 31, v0")
        if perm:
            g(f"""
            v_bfe_u32 v2, v1, 2, 1
            v_bfe_u32 v3, v1, 3, 1
            v_and_b32 v1, 0x13, v1
            v_lshl_or_b32 v1, v2, 3, v1
            v_lshl_or_b32 v1, v3, 2, v1
            """)
        g(f"""
        v_bfe_u32 v2, v1, 1, 3
        v_lshrrev_b32 v3, 5, v0
        v_xor_b32 v2, v2, v3
        v_lshlrev_b32 v2, 4, v2
        s_lshl_b32 s{S_T0}, s{S_T0}, 12
        v_lshl_add_u32 v1, v1, 7, v2
        v_add_u32 {vr(dst)}, s{S_T0}, v1
        v_xor_b32 {vr(dst+1)}, 32, {vr(dst)}
        v_xor_b32 {vr(dst+2)}, 64, {vr(dst)}
        v_xor_b32 {vr(dst+3)}, 0x60, {vr(dst)}
        """)

    def quad_regs(self):
        self.g(f"""
        v_bfe_u32 v1, v0, 2, 2
        v_lshrrev_b32 v2, 5, v0
        v_bfe_u32 v3, v0, 4, 1
        v_and_b32 {vr(T0)}, 3, v0
        v_lshl_add_u32 v3, v3, 2, {vr(T0)}
        """)

    def rd(self, op, dst, n, areg, addr):
        w = addr // 65536 * 65536
        if self.win[areg] != w:
            d = w - self.win[areg]
            self.g(f"v_add_u32 {vr(areg)}, 0x{d & 0xffffffff:x}, {vr(areg)}")
            self.win[areg] = w
        self.g(f"{op} {vr(dst, n)}, {vr(areg)} offset:{addr - w}")

    def fine_stamp(self, c, cons=False):
        if self.opt.get("stamps") and self.opt.get("fine") and not cons:
            self.nstamp = 3 + c
            self.stamp(f"b{c}")

    def rot(self, dst, s8, s4):
        g = self.g
        if self.opt.get("rot", 1):
            g(f"""
            s_mul_i32 s{S_T2}, s{s8}, 5
            s_lshr_b32 s{S_T2}, s{S_T2}, 2
            s_mul_i32 s{dst}, s{s4}, 5
            s_lshr_b32 s{dst}, s{dst}, 1
            s_add_u32 s{dst}, s{dst}, s{S_T2}
            s_sub_u32 s{S_T2}, s{dst}, 10
            s_cselect_b32 s{dst}, s{dst}, s{S_T2}
            """)
        else:
            g(f"s_mov_b32 s{dst}, 0")

    def next_kc(self, dst, src):
        self.g(f"s_add_u32 s{dst}, s{src}, 1\ns_cmp_eq_u32 s{dst}, 10\ns_cselect_b32 s{dst}, 0, s{dst}")

    def ld(self, c, what, kc):
        g = self.g
        base = (c % 5) * SLOT
        tag = f"c{c}"

        def go(srd, va, m0, add, cls=None):
            g(f"s_add_u32 m0, s{m0[0]}, {m0[1]}\ns_add_u32 s{S_SOFF}, s{S_T5}, {add}")
            g.emit(f"buffer_load_dwordx4 {vr(va)}, {sr(srd,4)}, s{S_SOFF} offen lds", tag=tag, cls=cls)

        if what == "x":
            g(f"s_lshl_b32 s{S_T5}, s{kc}, 7")
            for i in range(2 if c < 10 else 4):
                go(SRD_XB if c < 10 else SRD_XA, VX, (S_UK, base + 4096 * i), 32 * 1280 * i)
        elif what == "w" and c < 10:
            g(f"s_mul_i32 s{S_T5}, s{kc}, {64*1280}")
            for i in range(2):
                go(SRD_WQ, VWQ1, (S_UK, base + 8192 + 5120 * i), 32 * 1280 * i)
        elif what == "w":
            g(f"s_mul_i32 s{S_T5}, s{kc}, {64*3840}")
            for i in range(4):
                go(SRD_WQKV, VWA0, (S_UK, base + 16384 + 4096 * i), 16 * 3840 * i)
        else:
            g(f"s_mul_i32 s{S_T5}, s{kc}, s{S_STEP2}")
            go(SRD_S2, VS2, (S_M0E, base), 0)
            lab = g.label("Le1")
            g(f"s_cmp_eq_u32 s{S_W}, 6\ns_cbranch_scc0 {lab}")
            go(SRD_S2, VS2, (S_M0E, base + 2048), 2048, "extra")
            g(f"{lab}:")

    def loader_head(self):
        g = self.g
        g(f"s_mov_b32 s{S_T0}, s{S_T3}\ns_mov_b32 s{S_T1}, s{S_T4}")
        self.rot(S_KCS, S_T0, S_T1)
        for srd, n in ((SRD_XB, 2621440), (SRD_WQ, 819200)):
            g(f"s_mov_b32 s{srd+2}, {n}\ns_mov_b32 s{srd+3}, 0x20000")
        g(f"""
        s_lshl_b32 s{S_T0}, s{S_U}, 3
        v_lshrrev_b32 v1, 3, v0
        v_add_u32 v1, s{S_T0}, v1
        v_lshrrev_b32 v2, 1, v1
        v_xor_b32 v2, v2, v0
        v_and_b32 v2, 7, v2
        v_lshlrev_b32 v2, 4, v2
        s_lshl_b32 s{S_T1}, s{S_RBB}, 6
        v_add_u32 v1, s{S_T1}, v1
        v_mul_u32_u24 v1, 1280, v1
        v_add_u32 {vr(VX)}, v1, v2
        s_mul_i32 s{S_T2}, s{S_HG}, 160
        s_lshl_b32 s{S_T0}, s{S_U}, 6
        s_mul_i32 s{S_T1}, s{S_U}, 320
        s_add_u32 s{S_T1}, s{S_T1}, 256
        """)
        for dst, base in ((VWQ1, S_T0), (VS2, S_T1)):
            g(f"v_add_u32 v1, s{base}, v0")
            g(f"v_mul_u32_u24 v2, 6554, v1\nv_lshrrev_b32 v2, 16, v2")
            g(f"""
            v_mul_u32_u24 v3, 10, v2
            v_sub_u32 v1, v1, v3
            v_lshlrev_b32 v1, 4, v1
            v_and_b32 v3, 1, v2
            v_lshlrev_b32 v3, 2, v3
            v_bfe_u32 {vr(T0)}, v2, 1, 2
            v_and_b32 v2, 0xfff8, v2
            v_or3_b32 v2, v2, v3, {vr(T0)}
            v_mul_u32_u24 v2, 1280, v2
            v_add3_u32 {vr(dst)}, v1, v2, s{S_T2}
            """)
        g(f"""
        s_sub_u32 s{S_T0}, s{S_UK}, 2048
        v_add_u32 v1, s{S_T0}, {vr(VL16)}
        s_add_u32 s{S_T0}, s{S_T0}, 18432
        s_mul_i32 s{S_M0E}, s{S_U}, 5120
        s_add_u32 s{S_M0E}, s{S_M0E}, {8192+4096}
        s_cmp_lt_u32 s{S_U}, 2
        s_cselect_b64 s[{S_M2}:{S_M2+1}], -1, 0
        s_cselect_b32 s{S_M0E}, s{S_M0E}, s{S_T0}
        s_movk_i32 s{S_T0}, 2560
        s_movk_i32 s{S_T1}, 25600
        s_cselect_b32 s{S_STEP2}, {64*1280}, s{S_T0}
        s_cselect_b32 s{SRD_S2+2}, 819200, s{S_T1}
        s_mov_b32 s{SRD_S2+3}, 0x20000
        v_cndmask_b32 {vr(VS2)}, v1, {vr(VS2)}, s[{S_M2}:{S_M2+1}]
        """)
        self.next_kc(S_KCS + 1, S_KCS)
        self.next_kc(S_KCS + 2, S_KCS + 1)
        g(f"""
        s_waitcnt lgkmcnt(0)
        s_cmp_eq_u32 s{S_ISV}, 0
        s_cselect_b64 s[4:5], s[4:5], s[6:7]
        s_cmp_lt_u32 s{S_U}, 2
        s_cselect_b64 s[{SRD_S2}:{SRD_S2+1}], s[{SRD_WQ}:{SRD_WQ+1}], s[4:5]
        """)
        self.nstamp = 0
        self.stamp('karg')
        for c, what in ((0, "x"), (0, "w"), (0, "e"), (1, "x"), (2, "x")):
            self.ld(c, what, S_KCS + c)
        self.common_setup()
        for c in range(3, 10):
            self.next_kc(S_KCS + c, S_KCS + c - 1)
        self.epoch_load()
        self.stamp('setup')
        self.stamp('issued')

    SCHED = {0: "1w 1e 2w 2e", 1: "3x 3w 3e", 2: "4x 4w 4e", 3: "5x 5w 5e", 4: "6x 6w 6e", 5: "7x 7w 7e", 6: "8x 8w 8e",
             7: "9x 9w 9e 10w 10x", 8: "11w", 9: "12w 11x", 10: "12x", 11: "13w 13x", 12: "14w 14x", 13: "15w 15x",
             14: "16w 16x", 15: "17w 17x", 16: "18w 18x", 17: "19w 19x"}

    def loader_chunk(self, c):
        g = self.g
        for item in self.SCHED.get(c, "").split():
            n, what = int(item[:-1]), item[-1]
            if item == "10w":
                g(f"""
                s_lshl_b32 s{S_T0}, s{S_RBA}, 1
                s_sub_u32 s{S_T0}, s{S_T0}, s{S_RBB}
                s_mul_i32 s{S_T0}, s{S_T0}, {64*1280}
                v_add_u32 {vr(VX)}, s{S_T0}, {vr(VX)}
                s_and_b32 s{S_T0}, s{S_HP}, 7
                s_and_b32 s{S_T1}, s{S_RBA}, 3
                """)
                self.rot(S_KCS, S_T0, S_T1)
                for k in range(1, 10):
                    self.next_kc(S_KCS + k, S_KCS + k - 1)
            self.ld(n, what, S_KCS + n % 10)

    def kv_reads(self, s, kind):
        c, ks = divmod(s, 4)
        base = (c % 5) * SLOT
        f = FB + 8 * ks
        self.rd("ds_read_b128", f, 4, AXK + ks, base)
        for t in range(2):
            self.rd("ds_read_b64_tr_b16", f + 4 + 2 * t, 2, AWK, base + (16 * ks + 4 * t) * 40)

    def loaderB(self, kind):
        g = self.g
        if kind != "N":
            self.lds_addr_x(AXK, f"s_mov_b32 s{S_T0}, s{S_RHKV}", kind == "V")
            self.quad_regs()
            g(f"""
            v_min_u32 v3, 4, v3
            v_lshlrev_b32 v3, 3, v3
            v_lshl_add_u32 v1, v2, 3, v1
            v_mul_u32_u24 v1, 40, v1
            v_add_u32 v1, 18432, v1
            v_add_u32 {vr(AWK)}, v1, v3
            """)
        extras = {1: [self.setup_wa], 2: [lambda: self.setup_oaddr(True), self.epoch_tag], 3: [lambda: self.setup_oaddr(False)],
                  4: [self.setup_masks], 5: [self.setup_wo]}
        for c in range(10):
            g.vwait(f"c{c}")
            g("s_barrier")
            self.fine_stamp(c)
            if kind != "N":
                for ks in range(4):
                    self.kv_reads(4 * c + ks, kind)
            self.loader_chunk(c)
            if kind != "N":
                for ks in range(4):
                    f = FB + 8 * ks
                    g.lwait(vr(f, 8))
                    a, b = (f + 4, f) if kind == "K" else (f, f + 4)
                    g(f"v_mfma_f32_32x32x16_bf16 {vr(ACK,16)}, {vr(a,4)}, {vr(b,4)}, {'0' if c + ks == 0 else vr(ACK,16)}")
            for fn in extras.get(c, []):
                fn()
        if kind != "N":
            KT = 232
            g(f"s_mul_i32 s{S_T0}, s{S_RBB}, 5248\ns_add_u32 s{S_T0}, s{S_T0}, {WS_KVB}")
            if kind == "K":
                g(f"""
                s_lshl_b32 s{S_T1}, s{S_RHKV}, 10
                s_add_u32 s{S_T1}, s{S_T1}, s{S_T0}
                v_add_u32 v1, s{S_T1}, {vr(VL16)}
                s_lshl_b32 s{S_T1}, s{S_RHKV}, 8
                s_add_u32 s{S_T1}, s{S_T1}, s{S_T0}
                s_add_u32 s{S_T1}, s{S_T1}, 2048
                v_and_b32 v2, 31, v0
                v_lshlrev_b32 v2, 3, v2
                v_add_u32 v2, s{S_T1}, v2
                s_nop 0
                """)
                for i in range(6):
                    g(f"v_cvt_pk_bf16_f32 {vr(KT+i)}, {vr(ACK+2*i)}, {vr(ACK+2*i+1)}")
                g.emit(f"buffer_store_dwordx4 {vr(KT,4)}, v1, {sr(SRD_WS,4)}, 0 offen sc1", tag="kvb", cls="extra")
                g.emit(f"buffer_store_dwordx2 {vr(KT+4,2)}, v2, {sr(SRD_WS,4)}, 0 offen sc1", tag="kvb", cls="extra")
            else:
                g(f"""
                s_mul_i32 s{S_T1}, s{S_RHKV}, 1344
                s_add_u32 s{S_T1}, s{S_T1}, s{S_T0}
                s_add_u32 s{S_T1}, s{S_T1}, 2560
                v_and_b32 v2, 31, v0
                v_lshrrev_b32 v3, 5, v0
                v_mul_u32_u24 v3, 336, v3
                v_lshl_add_u32 v1, v2, 4, v3
                v_add_u32 v1, s{S_T1}, v1
                v_cmp_eq_u32 s[{S_M2}:{S_M2+1}], 20, v2
                v_cmp_lt_u32 s[{S_M3}:{S_M3+1}], 20, v2
                v_mov_b32 v2, {OOB}
                v_mov_b32 v3, 0x3f803f80
                v_cndmask_b32 v1, v1, v2, s[{S_M3}:{S_M3+1}]
                """)
                for i in range(8):
                    g(f"v_cvt_pk_bf16_f32 {vr(KT+i)}, {vr(ACK+2*i)}, {vr(ACK+2*i+1)}")
                for i in range(8):
                    g(f"v_cndmask_b32 {vr(KT+i)}, {vr(KT+i)}, v3, s[{S_M2}:{S_M2+1}]")
                g.emit(f"buffer_store_dwordx4 {vr(KT,4)}, v1, {sr(SRD_WS,4)}, 0 offen sc1", tag="kvb", cls="extra")
                g.emit(f"buffer_store_dwordx4 {vr(KT+4,4)}, v1, {sr(SRD_WS,4)}, 0 offen offset:672 sc1", tag="kvb", cls="extra")

    def q_xchg(self, write, q16, q4, a16, a4):
        g = self.g
        g(f"s_add_u32 s{S_T0}, s{S_UK}, {a16}\nv_add_u32 v1, s{S_T0}, {vr(VL16)}\nv_lshlrev_b32 v2, 3, v0\ns_add_u32 s{S_T0}, s{S_UK}, {a4}\nv_add_u32 v2, s{S_T0}, v2")
        if write:
            g(f"ds_write_b128 v1, {vr(q16,4)}\nds_write_b64 v2, {vr(q4,2)}")
        else:
            g(f"ds_read_b128 {vr(q16,4)}, v1\nds_read_b64 {vr(q4,2)}, v2")
        g.emit("s_waitcnt lgkmcnt(0)")

    def loaderA(self):
        g = self.g
        F1_AT = self.opt.get("f1at", 11)
        KV_AT = self.opt.get("kvat", 17)
        nun = 0
        for c in range(10, 20):
            g.vwait(f"c{c}")
            g("s_barrier")
            self.fine_stamp(c)
            if c == 11:
                self.q_xchg(False, QB16, QB4, 4 * SLOT + 24576, 4 * SLOT + 28672)
            if c == F1_AT:
                lab = g.label("Lf1")
                g(f"s_cmp_eq_u32 s{S_W}, 7\ns_cbranch_scc0 {lab}")
                g.emit(f"s_waitcnt vmcnt({nun})", cls="nocount")
                g(f"s_lshl_b32 s{S_T0}, s2, 7\ns_add_u32 s{S_T0}, s{S_T0}, {WS_F1}\nv_mov_b32 v1, s{S_T0}")
                g.emit(f"buffer_store_dword {vr(V_TAG)}, v1, {sr(SRD_WS,4)}, 0 offen sc1", cls="extra")
                g(f"{lab}:")
            self.loader_chunk(c)
            nun += 4 * len(self.SCHED.get(c, "").split())
            for cc in range(3):
                if c == max(KV_AT, 17 + min(cc, 1)):
                    for i in range(6):
                        lab = None
                        if i == 5:
                            lab = g.label("Lkv")
                            g(f"s_cmp_eq_u32 s{S_U}, 0\ns_cbranch_scc0 {lab}")
                        g(f"s_add_u32 m0, s{S_UK}, {RING[cc] + i*4096}\ns_add_u32 s{S_SOFF}, s{S_UK}, {WS_KVB + cc*20992 + i*4096}")
                        g.emit(f"buffer_load_dwordx4 {vr(VL16)}, {sr(SRD_WS,4)}, s{S_SOFF} offen sc1 lds", tag=f"kvb{cc}", cls="extra" if lab else None)
                        if lab:
                            g(f"{lab}:")
        self.nstamp = 23
        self.stamp('projA_end')
        g.vwait("kvb1")
        g("s_barrier")

    def c_reads(self, s):
        if s >= 80:
            return
        c, ks = divmod(s, 4)
        base = (c % 5) * SLOT
        f = FB + 16 * (s % 3)
        if s < 40:
            self.rd("ds_read_b128", f, 4, AXB + ks, base)
            for t in range(2):
                self.rd("ds_read_b64_tr_b16", f + 8 + 2 * t, 2, AWQ, base + (16 * ks + t) * 160)
            self.rd("ds_read_b128", f + 4, 4, AXB + ks, base + 4096)
        else:
            self.rd("ds_read_b128", f, 4, AXA + ks, base)
            for t in range(2):
                self.rd("ds_read_b64_tr_b16", f + 8 + 2 * t, 2, AWX, base + (16 * ks + 4 * t) * 256)
            self.rd("ds_read_b128", f + 4, 4, AXA + ks, base + 4096)
            for t in range(2):
                self.rd("ds_read_b64_tr_b16", f + 12 + 2 * t, 2, AWY, base + (16 * ks + 4 * t) * 256)

    def consumer(self):
        g = self.g
        g("L_cons:")
        self.common_setup()
        self.lds_addr_x(AXB, f"s_mov_b32 s{S_T0}, 0", False)
        self.lds_addr_x(AXA, f"s_and_b32 s{S_T0}, s{S_W}, 2", False)
        self.quad_regs()
        g(f"""
        v_min_u32 {vr(T0)}, 4, v3
        v_lshlrev_b32 {vr(T0)}, 3, {vr(T0)}
        v_lshl_add_u32 {vr(T1)}, v2, 2, v1
        v_mul_u32_u24 {vr(T1)}, 320, {vr(T1)}
        s_mul_i32 s{S_T0}, s{S_U}, 40
        s_add_u32 s{S_T0}, s{S_T0}, 8192
        v_add3_u32 {vr(AWQ)}, {vr(T1)}, {vr(T0)}, s{S_T0}
        v_lshl_add_u32 {vr(T1)}, v2, 3, v1
        v_lshlrev_b32 {vr(T1)}, 8, {vr(T1)}
        v_add_u32 {vr(T1)}, 16384, {vr(T1)}
        v_lshlrev_b32 v1, 6, v1
        s_and_b32 s{S_T0}, s{S_W}, 1
        s_lshl_b32 s{S_T1}, s{S_T0}, 7
        v_lshlrev_b32 {vr(T0)}, 3, v3
        v_add3_u32 v2, {vr(T0)}, v1, s{S_T1}
        v_and_b32 v2, 255, v2
        v_add_u32 {vr(AWX)}, {vr(T1)}, v2
        v_add_u32 v2, 64, v2
        v_and_b32 v2, 255, v2
        v_add_u32 {vr(AWY)}, {vr(T1)}, v2
        """)
        g("s_waitcnt lgkmcnt(0)")
        self.nstamp = 0
        self.stamp('karg')
        self.stamp('setup')
        self.stamp('issued')

        def q_epilogue():
            for rh, dst in ((0, QB16), (1, 232)):
                for i in range(12):
                    g(f"v_mul_f32 {vr(ACQ+16*rh+i)}, s{S_C}, {vr(ACQ+16*rh+i)}")
                for i in range(6):
                    g(f"v_cvt_pk_bf16_f32 {vr(dst+i)}, {vr(ACQ+16*rh+2*i)}, {vr(ACQ+16*rh+2*i+1)}")
            g(f"s_add_u32 s{S_T0}, s{S_UK}, {4*SLOT+24576}\nv_add_u32 v1, s{S_T0}, {vr(VL16)}\nv_lshlrev_b32 v2, 3, v0\ns_add_u32 s{S_T0}, s{S_UK}, {4*SLOT+28672}\nv_add_u32 v2, s{S_T0}, v2")
            g.emit("ds_write_b128 v1, v[232:235]", tag="qx")
            g.emit("ds_write_b64 v2, v[236:237]", tag="qx")

        def poll_issue():
            g(f"""
            v_lshlrev_b32 v1, 7, v0
            s_lshl_b32 s{S_T0}, s{S_U}, 13
            s_add_u32 s{S_T0}, s{S_T0}, {WS_F1}
            v_add_u32 {vr(VPA)}, s{S_T0}, v1
            """)
            g.emit(f"buffer_load_dword {vr(VPOLL)}, {vr(VPA)}, {sr(SRD_WS,4)}, 0 offen sc1")

        extras = {1: [self.setup_masks], 5: [self.setup_epa], 9: [self.setup_wo, self.epoch_load],
                  13: [lambda: self.setup_oaddr(True)], 17: [lambda: self.setup_oaddr(False)], 28: [self.epoch_tag], 41: [q_epilogue],
                  self.opt.get("pollat", 58): [poll_issue]}
        g("s_barrier")
        self.c_reads(0)
        self.c_reads(1)
        mf = "v_mfma_f32_32x32x16_bf16"
        for s in range(80):
            f = FB + 16 * (s % 3)
            if (s + 2) % 4 == 0:
                if s + 2 == 4 * self.opt.get("kvat", 17):
                    self.poll(VPA)
                g.lwait("qx")
                g("s_barrier")
                pass
            if s < 40:
                seq = [(ACQ, f + 8, f), (ACQ + 16, f + 8, f + 4)]
            else:
                seq = [(AX, f + 8, f), (AX + 32, f + 8, f + 4), (AY, f + 12, f), (AY + 32, f + 12, f + 4)]
            for n, (acc, a, b) in enumerate(seq):
                g.lwait(vr(a, 4), vr(b, 4))
                g(f"{mf} {vr(acc,16)}, {vr(a,4)}, {vr(b,4)}, {'0' if s in (0, 40) else vr(acc,16)}")
                if n == 0:
                    self.c_reads(s + 2)
            for fn in extras.get(s, []):
                fn()
        self.nstamp = 23
        self.stamp('projA_end')
        noscale = g.label("Lnoscale")
        g(f"s_cmp_lt_u32 s{S_CT}, 5\ns_cbranch_scc0 {noscale}\ns_nop 8")
        for i in range(64):
            g(f"v_mul_f32 {vr(AX+i)}, s{S_C}, {vr(AX+i)}")
        g(f"{noscale}:\ns_nop 9")
        for mi in range(2):
            for ni in range(2):
                for gq in range(4):
                    src = AX + 16 * ni + 32 * mi + 4 * gq
                    g(f"v_cvt_pk_bf16_f32 {vr(src)}, {vr(src)}, {vr(src+1)}\nv_cvt_pk_bf16_f32 {vr(src+1)}, {vr(src+2)}, {vr(src+3)}")
                    g.emit(f"buffer_store_dwordx2 {vr(src,2)}, {vr(EPA[4*ni+gq])}, {sr(SRD_WS,4)}, {'0' if mi == 0 else f's{S_TP}'} offen sc1", tag="kva")

    def setup_epa(self):
        g = self.g
        g(f"""
        s_mul_i32 s{S_T0}, s{S_CT}, 13108
        s_lshr_b32 s{S_T0}, s{S_T0}, 16
        s_mul_i32 s{S_T1}, s{S_T0}, 5
        s_sub_u32 s{S_T1}, s{S_CT}, s{S_T1}
        s_lshl_b32 s{S_T1}, s{S_T1}, 1
        s_and_b32 s{S_T2}, s{S_W}, 1
        s_add_u32 s{S_T1}, s{S_T1}, s{S_T2}
        s_lshl_b32 s{S_T1}, s{S_T1}, 4
        s_mul_i32 s{S_T5}, s{S_T0}, 1440
        s_add_u32 s{S_T5}, s{S_T5}, {WS_KVA - 1440}
        s_movk_i32 s{S_T3}, 288
        s_movk_i32 s{S_TP}, {KPITCH}
        s_cmp_eq_u32 s{S_T0}, 0
        s_cselect_b32 s{S_T5}, {WS_QA}, s{S_T5}
        s_cselect_b32 s{S_T3}, 256, s{S_T3}
        s_cselect_b32 s{S_TP}, 1280, s{S_TP}
        s_lshl_b32 s{S_T2}, s{S_TP}, 6
        s_lshl_b32 s{S_T0}, s{S_RBA}, 2
        s_and_b32 s{S_T4}, s{S_W}, 2
        s_add_u32 s{S_T0}, s{S_T0}, s{S_T4}
        s_mul_i32 s{S_T0}, s{S_T0}, s{S_TP}
        s_add_u32 s{S_T5}, s{S_T5}, s{S_T0}
        v_and_b32 v2, 31, v0
        v_lshlrev_b32 v2, 3, v2
        v_add_u32 v2, s{S_T5}, v2
        v_lshrrev_b32 v3, 5, v0
        v_add_u32 v3, s{S_T1}, v3
        """)
        for n in range(8):
            g(f"""
            v_add_u32 v1, {2*n}, v3
            v_mul_u32_u24 {vr(T0)}, 13108, v1
            v_lshrrev_b32 {vr(T0)}, 16, {vr(T0)}
            v_mul_u32_u24 {vr(T1)}, 5, {vr(T0)}
            v_sub_u32 v1, v1, {vr(T1)}
            v_mad_u32_u24 v1, v1, s{S_T3}, v2
            v_mad_u32_u24 {vr(EPA[n])}, {vr(T0)}, s{S_T2}, v1
            """)

    def poll(self, vaddr, n_after=None):
        g = self.g
        g.vwait(vr(VPOLL))
        ok, again = g.label("Lok"), g.label("Lpoll")
        g(f"""
        {again}:
        v_cmp_ne_u32 vcc, {vr(V_TAG)}, {vr(VPOLL)}
        s_nop 0
        s_cbranch_vccz {ok}
        s_sub_u32 s{S_SPIN}, s{S_SPIN}, 1
        s_cbranch_scc1 L_end
        """)
        g.lines.append(f"    buffer_load_dword {vr(VPOLL)}, {vr(vaddr)}, {sr(SRD_WS,4)}, 0 offen sc1")
        g.lines.append("    s_waitcnt vmcnt(0)")
        g(f"s_branch {again}\n{ok}:")

    def kvb_piece(self, c, i, tag):
        g = self.g
        lab = None
        if i == 2:
            lab = g.label("Lkv")
            g(f"s_cmp_ge_u32 s{S_W}, 5\ns_cbranch_scc1 {lab}")
        g(f"s_add_u32 m0, s{S_WK}, {RING[c % 3] + i*8192}\ns_add_u32 s{S_SOFF}, s{S_WK}, {WS_KVB + c*20992 + i*8192}")
        g.emit(f"buffer_load_dwordx4 {vr(VL16)}, {sr(SRD_WS,4)}, s{S_SOFF} offen sc1 lds", tag=tag, cls="extra" if lab else None)
        if lab:
            g(f"{lab}:")

    def kvb_chunk(self, c, tag):
        for i in range(3):
            self.kvb_piece(c, i, tag)

    def wo_ops(self, mat, ks0, npair, addr, tag):
        ops = []
        n = 10 * npair
        for i in range(-(-n // 8)):
            def op(i=i):
                g = self.g
                lab = None
                if 8 * i + 8 > n:
                    lab = g.label("Lwo")
                    g(f"s_cmp_lt_u32 s{S_W}, {n - 8*i}\ns_cbranch_scc0 {lab}")
                g(f"s_add_u32 m0, s{S_WK}, {addr + 8192*i}\ns_add_u32 s{S_SOFF}, s{S_WOG}, {mat*819200 + ks0*10240 + 8192*i}")
                g.emit(f"buffer_load_dwordx4 {vr(VL16)}, {sr(SRD_WS,4)}, s{S_SOFF} offen sc1 lds", tag=tag, cls="extra" if lab else None)
                if lab:
                    g(f"{lab}:")
            ops.append(op)
        return ops

    def finish_o(self, O, vm, ve, check):
        g = self.g
        g(f"""
        v_mov_b32 v1, {vr(O+8)}
        v_mov_b32 v2, {vr(O+8)}
        s_nop 1
        v_permlane32_swap_b32 v1, v2
        """)
        skip = None
        if check:
            skip = g.label("Lbad")
            good = g.label("Lgood")
            g(f"""
            s_mov_b32 s{S_T0}, {LMAX}
            v_cmp_nge_f32 vcc, s{S_T0}, v2
            s_cmp_lg_u32 s{S_PASS}, 0
            s_cbranch_scc1 {good}
            s_cbranch_vccz {good}
            v_mov_b32 v1, {L_FLAG}
            v_mov_b32 v2, 1
            """)
            g.lines.append("    ds_write_b32 v1, v2")
            g(f"s_branch {skip}\n{good}:")
        g(f"v_rcp_f32 v2, v2\ns_nop 0")
        for i in range(12):
            g(f"v_mul_f32 {vr(O+i)}, v2, {vr(O+i)}")
        for i in range(6):
            g(f"v_cvt_pk_bf16_f32 {vr(O+i)}, {vr(O+2*i)}, {vr(O+2*i+1)}")
        for i in range(6):
            g(f"v_min_u32 {vr(O+i)}, -2, {vr(O+i)}")
        g.emit(f"buffer_store_dwordx4 {vr(O,4)}, {vr(vm)}, {sr(SRD_WS,4)}, 0 offen sc1", tag="ost", cls="extra" if check else None)
        g.emit(f"buffer_store_dwordx2 {vr(O+4,2)}, {vr(ve)}, {sr(SRD_WS,4)}, 0 offen sc1", tag="ost", cls="extra" if check else None)
        if skip:
            g(f"{skip}:")

    def attnB(self):
        g = self.g
        S = [64, 96]
        O, NM, KA, KB, K4, AK, AK4, AV = 128, 144, 160, 164, 168, 170, 171, 188
        V = [172, 176, 180, 184]

        def koff(i):
            return RING[(i // 4) % 3] + (i % 4) * 5248

        RKA = lambda i: g(f"ds_read_b128 {vr(KA,4)}, {vr(AK)} offset:{koff(i)}")
        RKB = lambda i: g(f"ds_read_b128 {vr(KB,4)}, {vr(AK)} offset:{koff(i)+1024}")
        RK4 = lambda i: g(f"ds_read_b64 {vr(K4,2)}, {vr(AK4)} offset:{koff(i)+2048}")
        RV = lambda j, i: g(f"ds_read_b128 {vr(V[j],4)}, {vr(AV)} offset:{koff(i)+2560+672*j}")
        M0 = lambda d, c: g(f"v_mfma_f32_32x32x16_bf16 {vr(d,16)}, {vr(KA,4)}, {vr(QB16,4)}, {c}")
        M1 = lambda d, c: g(f"v_mfma_f32_32x32x16_bf16 {vr(d+16,16)}, {vr(KB,4)}, {vr(QB16,4)}, {c}")
        B2 = lambda d: g(f"v_mfma_f32_32x32x4_2b_bf16 {vr(d,32)}, {vr(K4,2)}, {vr(QB4,2)}, {vr(d,32)}")
        SM = lambda j, s: g(f"v_smfmac_f32_32x32x32_bf16 {vr(O,16)}, {vr(V[j],4)}, {vr(s+8*j,8)}, {vr(IDX)}")

        def rowmax(src, n, acc, init):
            i = 0
            if init:
                g(f"v_max3_f32 {vr(acc)}, {vr(src)}, {vr(src+1)}, {vr(src+2)}")
                i = 3
            while i + 1 < n:
                g(f"v_max3_f32 {vr(acc)}, {vr(acc)}, {vr(src+i)}, {vr(src+i+1)}")
                i += 2
            if i < n:
                g(f"v_max_f32 {vr(acc)}, {vr(acc)}, {vr(src+i)}")

        def set_nm(m):
            g(f"v_mov_b32 v2, {vr(m)}\ns_nop 1\nv_permlane32_swap_b32 {vr(m)}, v2\ns_nop 0\nv_max_f32 v2, v2, {vr(m)}")
            for i in range(16):
                g(f"v_sub_f32 {vr(NM+i)}, 0, v2")

        g(f"""
        v_mov_b32 {vr(AK)}, {vr(VL16)}
        v_lshlrev_b32 {vr(AK4)}, 3, v0
        v_and_b32 v1, 31, v0
        v_lshrrev_b32 v2, 5, v0
        v_mul_u32_u24 v2, 336, v2
        v_lshl_add_u32 {vr(AV)}, v1, 4, v2
        """)
        g(f"v_mov_b32 v1, {L_FLAG}\nv_mov_b32 v2, 0\nds_write_b32 v1, v2")
        self.stamp('attnB_start')
        RKA(0), RKB(0), RK4(0)
        g.lwait(vr(KB, 4))
        M0(S[0], "0"), M1(S[0], "0")
        g.lwait(vr(K4, 2))
        g("s_nop 8")
        B2(S[0])
        g("s_nop 15\ns_nop 3")
        rowmax(S[0], 32, 1, True)
        set_nm(1)
        g("L_attnB_main:")
        for i in range(16):
            g(f"v_mov_b32 {vr(O+i)}, 0")
        M0(S[0], vr(NM, 16)), RKA(1), M1(S[0], vr(NM, 16)), RKB(1)
        RV(0, 0), RV(1, 0), RV(2, 0)
        g("s_nop 5")
        B2(S[0])
        RK4(1)
        g("s_nop 15\ns_nop 1")
        bg = self.attnB_background()
        for i in range(32):
            cur, nxt = S[i % 2], S[1 - i % 2]
            c, it = divmod(i, 4)
            E = lambda a, b: [g(f"v_exp_f32 {vr(cur+e)}, {vr(cur+e)}") for e in range(a, b)]
            qk = i + 1 < 32
            rk = i + 2 < 32
            rv = i + 1 < 32
            if it == 2 and c >= 1:
                self.attnB_barrier(c)
            todo = list(bg.get(i, []))
            assert len(todo) <= 5

            def slot():
                if todo:
                    todo.pop(0)()

            if qk:
                g.lwait(vr(KA, 4), vr(KB, 4), vr(V[3], 4))
                M0(nxt, vr(NM, 16))
                if rk:
                    RKA(i + 2)
            slot()
            E(0, 3)
            if i > 0:
                g.lwait(vr(V[3], 4))
                SM(3, nxt)
            RV(3, i)
            E(3, 6)
            if qk:
                M1(nxt, vr(NM, 16))
                if rk:
                    RKB(i + 2)
            slot()
            E(6, 10)
            g.lwait(vr(V[0], 4), vr(K4, 2))
            SM(0, cur)
            if rv:
                RV(0, i + 1)
            E(10, 14)
            if qk:
                B2(nxt)
                if rk:
                    RK4(i + 2)
            slot()
            E(14, 22)
            g.lwait(vr(V[1], 4), vr(V[2], 4))
            SM(1, cur)
            if rv:
                RV(1, i + 1)
            slot()
            E(22, 26)
            SM(2, cur)
            if rv:
                RV(2, i + 1)
            slot()
            E(26, 32)
        g.lwait(vr(V[3], 4))
        g("s_nop 0")
        SM(3, S[1])
        self.stamp('attnB_end')
        g("s_nop 11")
        self.finish_o(O, VOB, VOB4, True)
        g.emit("s_waitcnt lgkmcnt(0)")
        g("s_barrier")
        g(f"v_mov_b32 v1, {L_FLAG}\nds_read_b32 v2, v1")
        self.attnA_setup()
        g.lwait("v2")
        g(f"v_readfirstlane_b32 s{S_T0}, v2\ns_nop 0\ns_cmp_lg_u32 s{S_T0}, s{S_PASS}\ns_cbranch_scc1 L_fallback")

        main = self.g
        self.g = g = Gen()
        g.nlab = 5000
        g("L_fallback:")
        g(f"s_mov_b32 s{S_PASS}, 1\nv_mov_b32 v1, {NBIG}\ns_waitcnt vmcnt(0)")
        for c in range(8):
            self.kvb_chunk(c, "x")
            g("s_waitcnt vmcnt(0)\ns_barrier")
            for it in range(4):
                i = 4 * c + it
                RKA(i), RKB(i), RK4(i)
                g("s_waitcnt lgkmcnt(0)")
                M0(S[0], "0"), M1(S[0], "0")
                g("s_nop 9")
                B2(S[0])
                g("s_nop 15\ns_nop 3")
                rowmax(S[0], 32, 1, False)
            g("s_barrier")
        set_nm(1)
        self.kvb_chunk(0, "x")
        self.kvb_chunk(1, "x")
        self.kvb_chunk(2, "x")
        g("s_waitcnt vmcnt(0)\ns_barrier")
        RKA(0), RKB(0), RK4(0)
        g("s_waitcnt lgkmcnt(0)\ns_branch L_attnB_main")
        self.fallback = g
        self.g = main

    def attnB_barrier(self, c):
        g = self.g
        if c == 5:
            self.poll(VPA)
        if c in (1, 2):
            g.emit("s_waitcnt vmcnt(0)")
        elif c == 7:
            g.vwait("ring8", "kva_ld", vr(QA16, 4), vr(QA4, 2))
        else:
            g.vwait(f"ring{c+1}")
        g("s_barrier")
        if c == 2:
            lab = g.label("Lf2")
            g(f"s_cmp_eq_u32 s{S_W}, 0\ns_cbranch_scc0 {lab}")
            g(f"s_lshl_b32 s{S_T0}, s2, 7\ns_add_u32 s{S_T0}, s{S_T0}, {WS_F2}\nv_mov_b32 v1, s{S_T0}")
            g.emit(f"buffer_store_dword {vr(V_TAG)}, v1, {sr(SRD_WS,4)}, 0 offen sc1", cls="extra")
            g(f"s_cmp_eq_u32 s2, 0\ns_cbranch_scc0 {lab}\nv_mov_b32 v1, {WS_EPOCH}")
            g.emit(f"buffer_store_dword {vr(V_TAG)}, v1, {sr(SRD_WS,4)}, 0 offen sc1", cls="extra")
            g(f"{lab}:")
        if c == 7:
            g(f"""
            v_min_u32 v1, 23, v0
            v_mul_u32_u24 v2, {KPITCH}, v1
            v_cmp_lt_u32 s[{S_M2}:{S_M2+1}], 11, v1
            v_add_u32 v2, {L_KVA + 256}, v2
            v_add_u32 v3, {KHEAD - 12*KPITCH}, v2
            v_cndmask_b32 v1, v2, v3, s[{S_M2}:{S_M2+1}]
            v_mov_b32 v2, 0x3f803f80
            v_mov_b32 v3, 0x3f803f80
            ds_write_b64 v1, v[2:3]
            """)

    def attnB_background(self):
        g = self.g
        bg = {}

        def put(i, ops, per=1):
            for n, op in enumerate(ops):
                bg.setdefault(i + n // per, []).append(op)

        def sent(n):
            vm, w = ((VOB, 4), (VOB4, 2), (VOA, 4), (VOA4, 2))[n]
            return lambda: g.emit(f"buffer_store_dwordx{w} {vr(SENT,w)}, {vr(vm)}, {sr(SRD_WS,4)}, 0 offen sc1", tag="sent")

        def poll_issue():
            g(f"""
            v_and_b32 v1, 31, v0
            v_lshlrev_b32 v1, 7, v1
            s_lshl_b32 s{S_T0}, s{S_W}, 12
            s_add_u32 s{S_T0}, s{S_T0}, {WS_F2}
            v_add_u32 {vr(VPA)}, s{S_T0}, v1
            s_mul_i32 s{S_WOG}, s{S_HG}, 102400
            s_add_u32 s{S_WOG}, s{S_WOG}, s{S_WK}
            s_add_u32 s{S_WOG}, s{S_WOG}, {WS_WO}
            """)
            g.emit(f"buffer_load_dword {vr(VPOLL)}, {vr(VPA)}, {sr(SRD_WS,4)}, 0 offen sc1")

        def kva(i):
            def op():
                if i == 0:
                    g(f"""
                    s_lshr_b32 s{S_KG}, s{S_W}, 2
                    s_mul_i32 s{S_KL}, s{S_KG}, {KHEAD}
                    s_add_u32 s{S_KL}, s{S_KL}, s{S_UK}
                    s_lshl_b32 s{S_T1}, s{S_HP}, 1
                    s_add_u32 s{S_KG}, s{S_KG}, s{S_T1}
                    s_lshl_b32 s{S_KG}, s{S_KG}, 4
                    s_add_u32 s{S_KG}, s{S_KG}, s{S_RBA}
                    s_mul_i32 s{S_KG}, s{S_KG}, {4*KPITCH}
                    s_add_u32 s{S_KG}, s{S_KG}, s{S_UK}
                    """)
                lab = None
                if i == 8:
                    lab = g.label("Lka")
                    g(f"s_cmp_lt_u32 s{S_U}, 2\ns_cbranch_scc0 {lab}")
                g(f"s_add_u32 m0, s{S_KL}, {L_KVA + i*4096}\ns_add_u32 s{S_SOFF}, s{S_KG}, {WS_KVA - 8*KPITCH + i*4096}")
                g.emit(f"buffer_load_dwordx4 {vr(VL16)}, {sr(SRD_WS,4)}, s{S_SOFF} offen sc1 lds", tag="kva_ld", cls="extra" if lab else None)
                if lab:
                    g(f"{lab}:")
            return op

        def qload():
            g(f"""
            s_and_b32 s{S_T0}, s{S_W}, 1
            s_lshl_b32 s{S_T1}, s{S_HP}, 1
            s_add_u32 s{S_T0}, s{S_T0}, s{S_T1}
            s_lshl_b32 s{S_T0}, s{S_T0}, 4
            s_add_u32 s{S_T0}, s{S_T0}, s{S_RBA}
            s_lshl_b32 s{S_T0}, s{S_T0}, 2
            s_add_u32 s{S_T0}, s{S_T0}, s{S_Q}
            s_mul_i32 s{S_T0}, s{S_T0}, 1280
            s_add_u32 s{S_T0}, s{S_T0}, {WS_QA}
            v_lshlrev_b32 v1, 3, v0
            v_mov_b32 v2, {OOB}
            v_cndmask_b32 v2, v1, v2, s[{S_UP}:{S_UP+1}]
            """)
            g.emit(f"buffer_load_dwordx2 {vr(QA16,2)}, v1, {sr(SRD_WS,4)}, s{S_T0} offen sc1")
            g.emit(f"buffer_load_dwordx2 {vr(QA16+2,2)}, v1, {sr(SRD_WS,4)}, s{S_T0} offen offset:512 sc1")
            g.emit(f"buffer_load_dwordx2 {vr(QA4,2)}, v2, {sr(SRD_WS,4)}, s{S_T0} offen offset:1024 sc1")

        def touch_woa():
            lab = g.label("Ltw")
            g(f"""
            s_cmp_lt_u32 s{S_W}, 2
            s_cbranch_scc0 {lab}
            s_lshl_b32 s{S_T0}, s{S_W}, 6
            v_add_u32 v1, s{S_T0}, v0
            v_min_u32 v1, 99, v1
            v_lshlrev_b32 v1, 7, v1
            s_and_b32 s{S_T0}, s{S_RBB}, 7
            s_mul_i32 s{S_T0}, s{S_T0}, 12800
            s_mul_i32 s{S_T1}, s{S_HG}, 102400
            s_add_u32 s{S_T0}, s{S_T0}, s{S_T1}
            s_add_u32 s{S_T0}, s{S_T0}, {WS_WO + 819200}
            """)
            g.emit(f"buffer_load_dword {vr(VPOLL)}, v1, {sr(SRD_WS,4)}, s{S_T0} offen sc1", cls="extra")
            g(f"{lab}:")

        put(0, [self.repack_load] + [sent(n) for n in range(4)], 3)
        put(7, [self.repack_store])
        for c in range(1, 6):
            put(4 * c + 2, [lambda c=c, n=n: self.kvb_piece(c + 2, n, f"ring{c+2}") for n in range(3)])
        put(19, [poll_issue])
        put(22, [kva(i) for i in range(9)] + [qload], 3)
        put(25, self.wo_ops(0, 0, 2, L_TAIL, "wob"), 3)
        put(26, self.wo_ops(0, 2, 2, RING[2], "wob"), 2)
        put(28, [touch_woa])
        put(30, self.wo_ops(0, 4, 2, RING[0], "wob"), 2)
        return bg

    def attnA_setup(self):
        g = self.g
        AK, AK4, AV = 160, 161, 164
        g(f"""
        s_and_b32 s{S_T1}, s{S_W}, 1
        s_mul_i32 s{S_T1}, s{S_T1}, {KHEAD}
        s_mul_i32 s{S_T3}, s{S_Q}, {KPITCH}
        s_add_u32 s{S_T1}, s{S_T1}, s{S_T3}
        s_add_u32 s{S_T1}, s{S_T1}, {L_KVA}
        s_lshl_b32 s{S_T3}, s{S_RBA}, 2
        s_add_u32 s{S_T2}, s{S_Q}, s{S_T3}
        s_min_u32 s{S_T2}, s{S_T2}, 8
        s_sub_u32 s{S_TSTART}, 8, s{S_T2}
        v_and_b32 v162, 31, v0
        v_lshlrev_b32 v162, 3, v162
        v_add_u32 v162, s{S_T1}, v162
        v_lshrrev_b32 v3, 5, v0
        v_mul_u32_u24 {vr(AK)}, 288, v3
        v_add_u32 {vr(AK)}, {vr(AK)}, v162
        s_add_u32 s{S_T2}, s{S_T1}, 256
        v_add_u32 v162, {4*288}, v162
        v_mov_b32 v168, s{S_T2}
        v_cndmask_b32 {vr(AK4)}, v162, v168, s[{S_UP}:{S_UP+1}]
        v_bfe_u32 v162, v0, 4, 1
        v_and_b32 v163, 3, v0
        v_lshl_add_u32 v162, v162, 2, v163
        v_cmp_lt_u32 s[{S_M2}:{S_M2+1}], 4, v162
        v_mul_u32_u24 v162, 288, v162
        v_bfe_u32 v163, v0, 2, 2
        v_lshl_add_u32 v163, v3, 3, v163
        v_lshl_add_u32 v162, v163, 3, v162
        s_add_u32 s{S_T1}, s{S_T1}, {5*288}
        v_add_u32 v162, s{S_T1}, v162
        v_cndmask_b32 {vr(AV)}, v162, v168, s[{S_M2}:{S_M2+1}]
        """)
        for n, off in ((1, 32), (2, 128), (3, 160)):
            g(f"v_add_u32 v163, {off}, v162\nv_cndmask_b32 {vr(AV+n)}, v163, v168, s[{S_M2}:{S_M2+1}]")

    def attnA(self):
        g = self.g
        S = [64, 80]
        O, KR, K4R, VR_ = 128, [96, 100], [104, 106], [108, 116]
        AK, AK4, AV, M = 160, 161, 164, 163
        OF = 192
        wob = self.wo_ops(0, 6, 2, RING[1], "wob")
        self.stamp('attnA_start')

        def RK(t):
            p = t % 2
            g(f"ds_read_b64 {vr(KR[p],2)}, {vr(AK)} offset:{t*KPITCH}")
            g(f"ds_read_b64 {vr(KR[p]+2,2)}, {vr(AK)} offset:{t*KPITCH+576}")
            g(f"ds_read_b64 {vr(K4R[p],2)}, {vr(AK4)} offset:{t*KPITCH}")

        def RV(t):
            p = t % 2
            for grp in range(2):
                for tt in range(2):
                    g(f"ds_read_b64_tr_b16 {vr(VR_[p]+4*grp+2*tt,2)}, {vr(AV+2*grp+tt)} offset:{t*KPITCH}")

        def M16(t):
            p = t % 2
            c = vr(MASKD, 16) if t == 8 else vr(MASKF, 16) if t == 0 else "0"
            g.lwait(vr(KR[p], 4), vr(K4R[p], 2))
            g(f"v_mfma_f32_32x32x16_bf16 {vr(S[p],16)}, {vr(KR[p],4)}, {vr(QA16,4)}, {c}")

        def X8(t):
            p = t % 2
            g(f"v_mfma_f32_32x32x8_bf16 {vr(S[p],16)}, {vr(K4R[p],2)}, {vr(QA4,2)}, {vr(S[p],16)}")

        RK(8), RK(7)
        for i in range(16):
            g(f"v_mov_b32 {vr(O+i)}, 0")
        M16(8), X8(8)
        RK(6)
        done = g.label("Lmaxdone")
        for t in range(8, -1, -1):
            p = t % 2
            if t > 0:
                M16(t - 1), X8(t - 1)
            if t < 8:
                g(f"s_cmp_gt_u32 s{S_TSTART}, {t}\ns_cbranch_scc1 {done}")
            if t == 8:
                for op in wob:
                    op()
            if t == 0:
                g("s_nop 0")
            if t == 8:
                g(f"v_max3_f32 {vr(M)}, {vr(S[p])}, {vr(S[p]+1)}, {vr(S[p]+2)}")
                rest = list(range(3, 16))
            else:
                rest = list(range(16))
            while len(rest) >= 2:
                g(f"v_max3_f32 {vr(M)}, {vr(M)}, {vr(S[p]+rest[0])}, {vr(S[p]+rest[1])}")
                rest = rest[2:]
            if rest:
                g(f"v_max_f32 {vr(M)}, {vr(M)}, {vr(S[p]+rest[0])}")
            if t - 3 >= 0:
                RK(t - 3)
        g(f"{done}:")
        g.emit("s_waitcnt lgkmcnt(0)")
        RK(8), RK(7), RV(8)
        g(f"""
        v_mov_b32 v2, {vr(M)}
        s_nop 1
        v_permlane32_swap_b32 {vr(M)}, v2
        s_nop 0
        v_max_f32 v2, v2, {vr(M)}
        v_cvt_pk_bf16_f32 v2, -v2, 0
        v_cndmask_b32 {vr(QA4)}, {vr(QA4)}, v2, s[{S_UP}:{S_UP+1}]
        s_nop 7
        """)
        stub = [g.label("Lstub"), g.label("Lstub")]
        stubl = [g.label("Lstubl"), g.label("Lstubl")]
        fin = g.label("Lfin")
        OFAT = self.opt.get("ofat", 3)
        self.of_addr()
        M16(8), X8(8)
        RK(6)
        g("s_nop 9")
        for t in range(8, -1, -1):
            p = t % 2
            E = lambda a, b: [g(f"v_exp_f32 {vr(S[p]+e)}, {vr(S[p]+e)}") for e in range(a, b)]
            SM = lambda tt, grp: g(f"v_smfmac_f32_32x32x32_bf16 {vr(O,16)}, {vr(VR_[tt%2]+4*grp,4)}, {vr(S[tt%2]+8*grp,8)}, {vr(IDX)}")
            if t < 8:
                g(f"s_cmp_gt_u32 s{S_TSTART}, {t}\ns_cbranch_scc1 {(stubl if t >= OFAT else stub)[(t + 1) % 2]}")
            if t == OFAT:
                self.of_loads(WS_OB, OF)
            E(0, 3)
            if t < 8:
                SM(t + 1, 1)
            if t > 0:
                RV(t - 1)
                M16(t - 1)
            E(3, 6)
            if t > 0:
                X8(t - 1)
                if t - 3 >= 0:
                    RK(t - 3)
            E(6, 10)
            g.lwait(vr(VR_[p], 8))
            SM(t, 0)
            E(10, 16)
        g(f"s_nop 1\n{stub[0]}:")
        g(f"v_smfmac_f32_32x32x32_bf16 {vr(O,16)}, {vr(VR_[0]+4,4)}, {vr(S[0]+8,8)}, {vr(IDX)}")
        g(f"s_branch {fin}")
        for p in range(2):
            g(f"{stubl[p]}:")
            self.of_loads(WS_OB, OF, raw=True)
            g(f"s_branch {stub[p]}")
        g(f"{stub[1]}:")
        g(f"v_smfmac_f32_32x32x32_bf16 {vr(O,16)}, {vr(VR_[1]+4,4)}, {vr(S[1]+8,8)}, {vr(IDX)}")
        g(f"{fin}:\ns_waitcnt lgkmcnt(0)\ns_nop 10")
        self.finish_o(O, VOA, VOA4, False)
        self.stamp('attnA_end')

    def of_addr(self):
        g = self.g
        g(f"""
        s_and_b32 s{S_T0}, s{S_W}, 3
        s_lshr_b32 s{S_T1}, s{S_T0}, 1
        s_lshl_b32 s{S_T2}, s{S_RBB}, 1
        s_add_u32 s{S_T1}, s{S_T1}, s{S_T2}
        s_mul_i32 s{S_T1}, s{S_T1}, 40960
        s_and_b32 s{S_T0}, s{S_T0}, 1
        s_lshl_b32 s{S_T0}, s{S_T0}, 8
        s_add_u32 s{S_T1}, s{S_T1}, s{S_T0}
        s_lshr_b32 s{S_T0}, s{S_W}, 2
        s_mul_i32 s{S_T0}, s{S_T0}, 20480
        s_add_u32 s{S_T1}, s{S_T1}, s{S_T0}
        v_lshrrev_b32 v1, 4, v0
        v_lshlrev_b32 v1, 9, v1
        v_and_b32 v2, 15, v0
        v_lshl_add_u32 v1, v2, 4, v1
        v_add_u32 {vr(VPA)}, s{S_T1}, v1
        """)

    def of_loads(self, base, OF, raw=False):
        g = self.g
        for ks in range(10):
            if ks % 2 == 0:
                g(f"s_mov_b32 s{S_SOFF}, {base + ks*2048}")
            t = f"buffer_load_dwordx4 {vr(OF+4*ks,4)}, {vr(VPA)}, {sr(SRD_WS,4)}, s{S_SOFF} offen offset:{(ks%2)*2048} sc1"
            if raw:
                g.lines.append("    " + t)
            else:
                g.emit(t)

    def of_check(self, base, OF):
        g = self.g
        g.vwait(vr(OF, 40))
        ok, again = g.label("Lofok"), g.label("Lofagain")
        g(f"{again}:")
        g(f"v_max3_u32 v1, {vr(OF)}, {vr(OF+1)}, {vr(OF+2)}\nv_max3_u32 v2, {vr(OF+3)}, {vr(OF+4)}, {vr(OF+5)}")
        for i in range(6, 38, 4):
            g(f"v_max3_u32 v1, v1, {vr(OF+i)}, {vr(OF+i+1)}\nv_max3_u32 v2, v2, {vr(OF+i+2)}, {vr(OF+i+3)}")
        g(f"v_max3_u32 v1, v1, {vr(OF+38)}, {vr(OF+39)}\nv_max_u32 v1, v1, v2\nv_cmp_eq_u32 vcc, -1, v1\ns_nop 0\ns_cbranch_vccz {ok}")
        g(f"s_sub_u32 s{S_SPIN}, s{S_SPIN}, 1\ns_cbranch_scc1 L_end")
        self.of_loads(base, OF, raw=True)
        g.lines.append("    s_waitcnt vmcnt(0)")
        g(f"s_branch {again}\n{ok}:")

    def outproj(self, blocks, OF, colbase, mid=None, bg={}):
        g = self.g
        WF, ACC, AW = [64, 84], 104, [124, 125, 126]
        T = 128

        def reads(ks):
            a = blocks[ks]
            w = a // 65536
            assert (a + 10240 + 160) // 65536 == w or True
            for nt in range(5):
                for t in range(2):
                    off = a + t * 2560 + nt * 32
                    ww = off // 65536
                    g(f"ds_read_b64_tr_b16 {vr(WF[ks%2]+4*nt+2*t,2)}, {vr(AW[ww])} offset:{off - ww*65536}")

        reads(0)
        for ks in range(10):
            for nt in range(5):
                if nt == 0 and ks + 1 < 10:
                    if mid and ks + 1 == 8:
                        g.lwait(vr(WF[ks % 2], 20))
                        mid()
                    g.lwait(vr(WF[ks % 2], 12))
                    reads(ks + 1)
                g.lwait(vr(WF[ks % 2] + 4 * nt, 4))
                g(f"v_mfma_f32_16x16x32_bf16 {vr(ACC+4*nt,4)}, {vr(WF[ks%2]+4*nt,4)}, {vr(OF+4*ks,4)}, {'0' if ks == 0 else vr(ACC+4*nt,4)}")
                if nt >= 1 and nt - 1 < len(bg.get(ks, [])):
                    bg[ks][nt - 1]()
        hi, join = g.label("Lhi"), g.label("Ljoin")
        g(f"""
        s_and_b32 s{S_T0}, s{S_W}, 3
        s_mul_i32 s{S_T0}, s{S_T0}, 5120
        v_add_u32 v1, s{S_T0}, {vr(VL16)}
        s_lshl_b32 s{S_T1}, s{S_RBB}, 6
        s_and_b32 s{S_T2}, s{S_W}, 3
        s_lshl_b32 s{S_T2}, s{S_T2}, 4
        s_add_u32 s{S_T1}, s{S_T1}, s{S_T2}
        v_and_b32 v2, 15, v0
        v_add_u32 v2, s{S_T1}, v2
        v_mul_u32_u24 v2, 2560, v2
        v_lshrrev_b32 v3, 4, v0
        v_lshl_add_u32 v2, v3, 3, v2
        s_mul_i32 s{S_T1}, s{S_HG}, 160
        s_add_u32 s{S_T1}, s{S_T1}, {colbase*2}
        v_add_u32 v2, s{S_T1}, v2
        s_cmp_ge_u32 s{S_W}, 4
        s_cbranch_scc1 {hi}
        """)
        saved = (list(g.lq), list(g.vq))
        for send, keep, soff, roff in (((3, 4), (0, 1, 2), 0, 2048), ((0, 1, 2), (3, 4), 2048, 0)):
            g.lq, g.vq = list(saved[0]), list(saved[1])
            for i, nt in enumerate(send):
                g(f"ds_write_b128 v1, {vr(ACC+4*nt,4)} offset:{RING[0]+soff+1024*i}")
            g.emit("s_waitcnt lgkmcnt(0)")
            g("s_barrier")
            for i, nt in enumerate(keep):
                g(f"ds_read_b128 {vr(T+4*i,4)}, v1 offset:{RING[0]+roff+1024*i}")
            for i, nt in enumerate(keep):
                g.lwait(vr(T + 4 * i, 4))
                for j in range(4):
                    g(f"v_add_f32 {vr(T+4*i+j)}, {vr(T+4*i+j)}, {vr(ACC+4*nt+j)}")
                g(f"v_cvt_pk_bf16_f32 {vr(T+4*i)}, {vr(T+4*i)}, {vr(T+4*i+1)}\nv_cvt_pk_bf16_f32 {vr(T+4*i+1)}, {vr(T+4*i+2)}, {vr(T+4*i+3)}")
                g.emit(f"buffer_store_dwordx2 {vr(T+4*i,2)}, v2, {sr(SRD_OUT,4)}, 0 offen offset:{32*nt}", cls="extra" if i == 2 else None)
            if send == (3, 4):
                g(f"s_branch {join}\n{hi}:")
        g(f"{join}:")

    def tail(self):
        g = self.g
        OFB, OFA = 192, 144
        AW = [124, 125, 126]
        g(f"""
        v_lshrrev_b32 v1, 2, v0
        v_mul_u32_u24 v1, 160, v1
        v_and_b32 v2, 3, v0
        v_lshl_add_u32 v1, v2, 3, v1
        s_lshr_b32 s{S_T0}, s{S_W}, 2
        s_mul_i32 s{S_T0}, s{S_T0}, 5120
        v_add_u32 {vr(AW[0])}, s{S_T0}, v1
        v_add_u32 {vr(AW[1])}, 0x10000, {vr(AW[0])}
        v_add_u32 {vr(AW[2])}, 0x20000, {vr(AW[0])}
        """)
        self.of_check(WS_OB, OFB)
        g("s_barrier")
        self.stamp('outB_start')
        early = self.wo_ops(0, 8, 2, L_KVA, "wob_late") + self.wo_ops(1, 0, 5, L_KVA + 20480, "woa")
        blocksB = [L_TAIL, L_TAIL + 10240, RING[2], RING[2] + 10240, RING[0], RING[0] + 10240, RING[1], RING[1] + 10240, L_KVA, L_KVA + 10240]
        lateA = [L_TAIL, L_TAIL + 10240, RING[2], RING[2] + 10240, RING[1]]
        blocksA = [L_KVA + 20480 + 10240 * i for i in range(5)] + lateA
        late = self.wo_ops(1, 5, 2, L_TAIL, "woa") + self.wo_ops(1, 7, 2, RING[2], "woa") + self.wo_ops(1, 9, 1, RING[1], "woa")

        def mid():
            g.vwait("wob_late")
            g("s_barrier")

        bgB = {ks: early[2 * ks:2 * ks + 2] for ks in range(5)}
        bgB[7] = late[:3]
        bgB[8] = late[3:6]
        bgB[9] = late[6:] + [lambda: self.of_loads(WS_OA, OFA)]
        self.outproj(blocksB, OFB, 640, mid, bgB)
        self.stamp('outB_end')
        self.of_check(WS_OA, OFA)
        g("s_barrier")
        self.stamp('outA_start')
        self.outproj(blocksA, OFA, 0)
        self.stamp('outA_end')

    def build(self):
        g = self.g
        self.prologue()
        self.win = {r: 0 for r in range(64, 84)}
        self.loader_head()
        g(f"s_cmp_eq_u32 s{S_W}, 7\ns_cbranch_scc0 L_ldB_N\ns_cmp_eq_u32 s{S_ISV}, 0\ns_cbranch_scc0 L_ldB_V")
        st = (list(g.lq), list(g.vq), dict(self.win))
        for kind in "KVN":
            g.lq, g.vq, self.win = list(st[0]), list(st[1]), dict(st[2])
            if kind != "K":
                g(f"L_ldB_{kind}:")
            self.loaderB(kind)
            if kind != "N":
                g("s_branch L_ldA")
        g("L_ldA:")
        self.loaderA()
        g("s_branch L_attnB")
        g.lq, g.vq, self.win = [], [], {r: 0 for r in range(64, 84)}
        self.consumer()
        g("L_attnB:")
        g.vq = [(q, "extra") for q, c in g.vq]
        self.attnB()
        self.attnA()
        self.tail()
        if self.opt.get("stamps"):
            g("L_stamps:")
            g.lines.append("    s_memrealtime s[98:99]")
            g(f"""
            s_waitcnt lgkmcnt(0)
            v_writelane_b32 v255, s94, 60
            v_writelane_b32 v255, s96, 61
            v_writelane_b32 v255, s98, 62
            s_lshl_b32 s{S_T0}, s2, 3
            s_add_u32 s{S_T0}, s{S_T0}, s{S_W}
            s_lshl_b32 s{S_T0}, s{S_T0}, 8
            s_add_u32 s{S_T0}, s{S_T0}, {WS_STAMP}
            v_lshlrev_b32 v1, 2, v0
            v_add_u32 v1, s{S_T0}, v1
            buffer_store_dword v255, v1, {sr(SRD_WS,4)}, 0 offen
            """)
        g("L_end:\ns_endpgm")
        lines = g.lines + self.fallback.lines
        probs = check_hazards(lines)
        for p in probs:
            print("HAZARD", p, file=sys.stderr)
        head = open(f"cdna_kernels/{NAME}.s.ref").read().split("; Override launch")[0]
        out = head + f"; @launch grid=(256,1,1) block=(512,1,1) lds={LDS_BYTES}\n"
        out += f""".amdgcn_target "amdgcn-amd-amdhsa--gfx950"
.text
.globl {NAME}_kernel
.p2align 8
.type {NAME}_kernel,@function
{NAME}_kernel:
"""
        if self.opt.get("stamps"):
            out = out.replace("; @launch", "; STAMPS " + repr((self.opt["stamps"], self.names)) + "\n; @launch")
        out += "\n".join(lines) + "\n"
        out += f""".section .rodata,"a"
.p2align 6
.amdhsa_kernel {NAME}_kernel
  .amdhsa_next_free_vgpr 256
  .amdhsa_next_free_sgpr 102
  .amdhsa_accum_offset 256
  .amdhsa_group_segment_fixed_size 0
  .amdhsa_kernarg_size 88
  .amdhsa_user_sgpr_count 2
  .amdhsa_user_sgpr_kernarg_segment_ptr 1
  .amdhsa_system_sgpr_workgroup_id_x 1
.end_amdhsa_kernel
"""
        return out, probs


if __name__ == "__main__":
    opt = {}
    path = f"cdna_kernels/{NAME}.s"
    for a in sys.argv[1:]:
        if a.startswith("-o"):
            path = a[2:]
        else:
            k, _, v = a.partition("=")
            opt[k] = int(v) if v else 1
    text, probs = K(opt).build()
    open(path, "w").write(text)
    print("wrote", path, len(text), "bytes;", len(probs), "hazards")
```

```python
import copy
import struct
import sys

from asmlib import Gen, check_hazards, sr, vr

NAME = "concat_heads__sliding_block__grouped_kv_mqa__prompt"
CSCALE = struct.unpack("<I", struct.pack("<f", 20 ** -0.5 * 1.4426950408889634))[0]
BIG = struct.unpack("<I", struct.pack("<f", 1e30))[0]
NBIG = struct.unpack("<I", struct.pack("<f", -1e30))[0]
LMAXA = struct.unpack("<I", struct.pack("<f", 2.0 ** 90))[0]
LMAX = struct.unpack("<I", struct.pack("<f", 2.0 ** 64))[0]

WS_EPOCH = 0
WS_F1 = 0x1000
WS_F2 = 0x10000
WS_F3 = 0x18000
WS_KVB = 0x20000
WS_KVA = 0x80000
WS_QA = 0x680000
WS_OB = 0x900000
WS_OA = 0xB80000
WS_WO = 0xE00000
WS_STAMP = 0x1000000
WS_SIZE = 0x1100000
KPITCH = 2880
KHEAD = 34816
OOB = 0x7F000000

SLOT = 32768
RING = [0, 21504, 43008]
L_FLAG = 64512
L_KVA = 65536
L_TAIL = 139264
LDS_BYTES = 163840

SRD_XA, SRD_WQKV, SRD_WOA, SRD_XB, SRD_WQ, SRD_WOB, SRD_OUT, SRD_WS, SRD_S2 = 20, 24, 28, 32, 36, 44, 48, 52, 56
S_W, S_RBA, S_HP, S_RBB, S_HG, S_TAG, S_WK, S_STEP2, S_SOFF, S_KC = 60, 61, 62, 63, 64, 65, 66, 67, 68, 69
S_T0, S_T1, S_T2, S_T3, S_T4, S_T5 = 70, 71, 72, 73, 74, 75
S_ISV, S_RHKV, S_TSTART, S_PASS, S_SPIN, S_U, S_UK, S_Q = 76, 77, 78, 79, 80, 81, 82, 83
S_M0E, S_CT, S_TP, S_RPM, S_RPD, S_WOG = 40, 43, 41, 18, 19, 42
S_RPT, S_BIAS, S_AB, S_QS = 91, 10, 65, 11
S_KG, S_KL = 8, 9
S_KCS = 8
S_UP = 84
S_M2 = 86
S_M3 = 88
S_C = 90
S_STMP = 92
S_ST0 = 8

V_L = 0
QB16, QB4, QA4, QA16, IDX, V_TAG = 4, 8, 10, 12, 16, 17
VOB, VOB4, VOA, VOA4 = 18, 19, 20, 21
VX, VWQ1, VS2, VWA0, VWA1, VL16, VWOM, VWOE, VPOLL, VPA = 22, 23, 24, 25, 26, 27, 28, 29, 30, 31
MASKD, MASKF = 32, 48
AXB, AWQ, AXK, AWK, AWX, AWY, AXA = 64, 68, 70, 74, 75, 76, 78
ACQ, ACK, AX, AY, FB = 84, 112, 120, 136, 184
AWO, VRED, VOUT, VOF = [240, 241, 242], 243, 244, 29
AKA, AK4A, AVA = 245, 246, [247, 252, 253, 254]
W89, OFB = 192, [144 + 4 * k for k in range(10)]
OFA = [32 + 4 * k for k in range(8)] + [232, 236]
VOUT4 = 26
PL = 22
RPK = 232
EPA = [232 + n for n in range(8)]
QKV = 192
T0, T1, T2, T3, T4, SENT = 240, 241, 242, 243, 244, 248


class K:
    def __init__(self, opt):
        self.g = Gen()
        self.opt = opt
        self.nstamp = 0
        self.names = {}
        self.fallback_a = Gen()
        self.after_piece = []

    def stamp(self, name=''):
        if not self.opt.get("stamps"):
            return
        g = self.g
        assert self.nstamp < 60
        ins = "s_memrealtime" if self.opt.get("stamps") == 2 else "s_memtime"
        g.lines.append(f"    {ins} s[{S_STMP}:{S_STMP+1}]")
        g.emit("s_waitcnt lgkmcnt(0)")
        g(f"v_writelane_b32 v255, s{S_STMP}, {self.nstamp}")
        self.names[self.nstamp] = name
        self.nstamp += 1

    def dma(self, srd, vaddr, soff, lds, tag=None, cls=None, sc1=False, wavebase=True):
        g = self.g
        if wavebase:
            g(f"s_add_u32 m0, s{S_WK}, {lds}")
        else:
            g(f"s_mov_b32 m0, {lds}")
        if isinstance(soff, int):
            g(f"s_mov_b32 s{S_SOFF}, {soff}")
            so = f"s{S_SOFF}"
        else:
            g("s_nop 0")
            so = soff
        g.emit(f"buffer_load_dwordx4 {vr(vaddr)}, {sr(srd,4)}, {so} offen{' sc1' if sc1 else ' nt' if self.opt.get('dmant') else ''} lds", tag=tag, cls=cls)

    def div_small(self, dst, src, d, tmp_s):
        g = self.g
        mul = {10: 6554, 15: 4370}[d]
        for u in range(1024):
            assert (u * mul) >> 16 == u // d
        g(f"v_mul_u32_u24 {vr(dst)}, {mul}, {vr(src)}")
        g(f"v_lshrrev_b32 {vr(dst)}, 16, {vr(dst)}")

    def prefetch(self, which):
        g = self.g
        nt = " nt" if self.opt.get("pfnt") else ""
        end = g.label("Lpf")
        g(f"""
        s_lshr_b32 s{S_T0}, s2, 3
        s_and_b32 s{S_T1}, s2, 3
        s_bfe_u32 s{S_T2}, s2, 0x10002
        s_lshl_b32 s{S_T3}, s{S_W}, 6
        v_add_u32 v1, s{S_T3}, v0
        """)

        def xrows(srd):
            g(f"""
            s_lshl_b32 s{S_T1}, s{S_T1}, 5
            s_add_u32 s{S_T1}, s{S_T1}, s{S_T0}
            s_mul_i32 s{S_T1}, s{S_T1}, {16*1280}
            v_min_u32 v1, 159, v1
            v_lshlrev_b32 v1, 7, v1
            """)
            g.emit(f"buffer_load_dword v254, v1, {sr(srd,4)}, s{S_T1} offen{nt}", cls="extra", tag="pf")

        def wcols(srd, first, parts, pitch):
            n = 100 * parts
            g(f"v_subrev_u32 v1, {first*64}, v1\nv_min_u32 v1, {n-1}, v1\nv_mul_u32_u24 v2, 13108, v1\nv_lshrrev_b32 v2, 16, v2")
            for u in range(n):
                assert (u * 13108) >> 16 == u // 5
            g(f"""
            v_mul_u32_u24 v3, 5, v2
            v_sub_u32 v1, v1, v3
            v_lshlrev_b32 v1, 7, v1
            v_mul_u32_u24 v2, 1280, v2
            v_add_u32 v1, v1, v2
            s_mul_i32 s{S_T0}, s{S_T0}, {20*pitch}
            s_mul_i32 s{S_T2}, s{S_T2}, 640
            s_add_u32 s{S_T0}, s{S_T0}, s{S_T2}
            """)
            g.emit(f"buffer_load_dword v254, v1, {sr(srd,4)}, s{S_T0} offen{nt}", cls="extra", tag="pf")

        if which in "AB":
            l1 = g.label("Lpf")
            g(f"s_cmp_ge_u32 s{S_W}, 3\ns_cbranch_scc1 {l1}")
            xrows(SRD_XA if which == "A" else SRD_XB)
            g(f"s_branch {end}\n{l1}:")
            g.vq = [x for x in g.vq if "pf" not in x[0]]
            if which == "A":
                wcols(SRD_WQKV, 3, 3, 3840)
            else:
                g(f"s_cmp_ge_u32 s{S_W}, 5\ns_cbranch_scc1 {end}")
                wcols(SRD_WQ, 3, 1, 1280)
        else:
            l1 = g.label("Lpf")
            g(f"s_cmp_ge_u32 s{S_W}, 2\ns_cbranch_scc1 {l1}")
            wcols(SRD_WOB, 0, 1, 1280)
            g(f"s_branch {end}\n{l1}:")
            g.vq = [x for x in g.vq if "pf" not in x[0]]
            g(f"s_cmp_ge_u32 s{S_W}, 4\ns_cbranch_scc1 {end}")
            wcols(SRD_WOA, 2, 1, 1280)
        g(f"{end}:")
        g.vq = [(q - {("v", 254)}, c) for q, c in g.vq]

    def prologue(self):
        g = self.g
        g(f"""
        s_cmp_ge_u32 s2, 256
        s_cbranch_scc1 L_end
        s_load_dwordx2 s[{SRD_XB}:{SRD_XB+1}], s[0:1], 24
        s_load_dwordx2 s[{SRD_WQ}:{SRD_WQ+1}], s[0:1], 32
        s_load_dwordx4 s[4:7], s[0:1], 40
        s_load_dwordx2 s[{SRD_WS}:{SRD_WS+1}], s[0:1], 80
        s_load_dwordx2 s[{SRD_XA}:{SRD_XA+1}], s[0:1], 0
        s_load_dwordx2 s[{SRD_WQKV}:{SRD_WQKV+1}], s[0:1], 8
        s_load_dwordx2 s[{SRD_WOA}:{SRD_WOA+1}], s[0:1], 16
        s_load_dwordx2 s[{SRD_WOB}:{SRD_WOB+1}], s[0:1], 56
        s_load_dwordx2 s[{SRD_OUT}:{SRD_OUT+1}], s[0:1], 64
        """)
        if self.opt.get("stamps"):
            g.lines.append(f"    s_memrealtime s[94:95]")
            g.lines.append(f"    s_memtime s[96:97]")
        g(f"""
        v_lshrrev_b32 v1, 6, v0
        v_and_b32 v0, 63, v0
        v_readfirstlane_b32 s{S_W}, v1
        s_and_b32 s{S_T0}, s2, 3
        s_bfe_u32 s{S_T1}, s2, 0x10002
        s_bfe_u32 s{S_T3}, s2, 0x30003
        s_lshl_b32 s{S_RBB}, s{S_T0}, 3
        s_add_u32 s{S_RBB}, s{S_RBB}, s{S_T3}
        s_lshr_b32 s{S_T4}, s2, 6
        s_lshl_b32 s{S_HG}, s{S_T1}, 2
        s_add_u32 s{S_HG}, s{S_HG}, s{S_T4}
        s_lshl_b32 s{S_WK}, s{S_W}, 10
        s_and_b32 s{S_U}, s{S_W}, 3
        s_lshl_b32 s{S_UK}, s{S_U}, 10
        s_bfe_u32 s{S_ISV}, s{S_HG}, 0x10001
        v_lshlrev_b32 {vr(VL16)}, 4, v0
        {self.ab_select() if self.opt.get("dual") else ""}
        s_cmp_lt_u32 s{S_W}, 4
        s_cbranch_scc1 L_cons
        """)
        if self.opt.get("dual"):
            g(f"s_cmp_eq_u32 s{S_AB}, 1\ns_cbranch_scc1 L_ld_AB")

    def ab_select(self):
        d = self.opt.get("dual", 0)
        if d == 2:
            return (f"s_lshr_b32 s{S_AB}, s2, 5\ns_lshl_b32 s{S_T2}, s{S_T1}, 1\ns_add_u32 s{S_AB}, s{S_AB}, s{S_T2}\ns_lshr_b32 s{S_T2}, s2, 3\n"
                    f"s_xor_b32 s{S_AB}, s{S_AB}, s{S_T2}\ns_and_b32 s{S_AB}, s{S_AB}, 3\ns_cmp_eq_u32 s{S_AB}, 0\ns_cselect_b32 s{S_AB}, 1, 0")
        return (f"s_lshr_b32 s{S_AB}, s2, 1\ns_xor_b32 s{S_AB}, s{S_AB}, s2\ns_lshr_b32 s{S_AB}, s{S_AB}, 2\n"
                f"s_xor_b32 s{S_AB}, s{S_AB}, s{S_T4}\ns_and_b32 s{S_AB}, s{S_AB}, {d}")

    def common_setup(self):
        g = self.g
        for srd, n in ((SRD_WS, WS_SIZE), (SRD_XA, 2621440), (SRD_WQKV, 2457600), (SRD_WOA, 819200), (SRD_WOB, 819200), (SRD_OUT, 5242880)):
            g(f"s_mov_b32 s{srd+2}, {n}\ns_mov_b32 s{srd+3}, 0x20000")
        g(f"""
        s_and_b32 s{S_T0}, s2, 3
        s_bfe_u32 s{S_T1}, s2, 0x10002
        s_bfe_u32 s{S_T3}, s2, 0x20003
        s_lshl_b32 s{S_RBA}, s{S_T0}, 2
        s_add_u32 s{S_RBA}, s{S_RBA}, s{S_T3}
        s_lshr_b32 s{S_T3}, s2, 5
        s_lshl_b32 s{S_HP}, s{S_T1}, 3
        s_add_u32 s{S_HP}, s{S_HP}, s{S_T3}
        s_min_u32 s{S_CT}, s{S_HP}, 14
        s_and_b32 s{S_RHKV}, s{S_HG}, 1
        s_bfe_u32 s{S_Q}, s{S_W}, 0x10001
        s_lshl_b32 s{S_Q}, s{S_Q}, 1
        s_lshr_b32 s{S_T0}, s{S_W}, 2
        s_add_u32 s{S_Q}, s{S_Q}, s{S_T0}
        s_mov_b32 s{S_UP}, 0
        s_mov_b32 s{S_UP+1}, -1
        s_mov_b32 s{S_C}, {CSCALE}
        s_mov_b32 s{S_PASS}, 0
        s_mov_b32 s{S_SPIN}, 0x40000
        v_mov_b32 {vr(IDX)}, 0xdddddddd
        """)

    def late_setup(self):
        self.attnA_setup()
        self.of_addr()
        self.tail_setup()

    def epoch_load(self):
        g = self.g
        g(f"v_mov_b32 v1, {WS_EPOCH}")
        g.emit(f"buffer_load_dword {vr(V_TAG)}, v1, {sr(SRD_WS,4)}, 0 offen sc1")

    def epoch_tag(self):
        g = self.g
        g.vwait(vr(V_TAG))
        g(f"v_add_u32 {vr(V_TAG)}, 0x9e3779b9, {vr(V_TAG)}")

    def setup_masks(self):
        g = self.g
        g(f"""
        v_and_b32 v3, 31, v0
        v_lshrrev_b32 v2, 5, v0
        v_lshlrev_b32 v2, 2, v2
        v_sub_u32 v3, v3, v2
        v_mov_b32 {vr(VPOLL)}, {NBIG}
        """)
        for r0 in range(0, 16, 2):
            for r, m in ((r0, S_M2), (r0 + 1, S_M3)):
                g(f"v_cmp_gt_i32 s[{m}:{m+1}], {8*(r//4)+r%4}, v3")
            g("s_nop 0")
            for r, m in ((r0, S_M2), (r0 + 1, S_M3)):
                g(f"v_cndmask_b32 {vr(MASKD+r)}, 0, {vr(VPOLL)}, s[{m}:{m+1}]\nv_cndmask_b32 {vr(MASKF+r)}, {vr(VPOLL)}, 0, s[{m}:{m+1}]")

    def setup_oaddr(self, isb):
        g = self.g
        vm, ve, base = (VOB, VOB4, WS_OB) if isb else (VOA, VOA4, WS_OA)
        sh = 2 if isb else 1
        g(f"""
        v_and_b32 v2, 31, v0
        v_lshlrev_b32 v2, 4, v2
        v_lshrrev_b32 v3, 5, v0
        v_lshl_add_u32 v3, v3, 9, v2
        s_and_b32 s{S_T0}, s{S_W}, {(1 << sh) - 1}
        s_lshl_b32 s{S_T1}, s{S_HG if isb else S_HP}, {sh}
        s_add_u32 s{S_T0}, s{S_T0}, s{S_T1}
        {f's_lshr_b32 s{S_T1}, s{S_W}, 2' if isb else f's_mov_b32 s{S_T1}, s{S_Q}'}
        s_lshl_b32 s{S_T2}, s{S_RBB if isb else S_RBA}, {3 - sh}
        s_add_u32 s{S_T1}, s{S_T1}, s{S_T2}
        s_mul_i32 s{S_T1}, s{S_T1}, 40960
        s_add_u32 s{S_T1}, s{S_T1}, {base}
        s_lshr_b32 s{S_T2}, s{S_T0}, 3
        s_mul_i32 s{S_T2}, s{S_T2}, {20*512}
        s_add_u32 s{S_T1}, s{S_T1}, s{S_T2}
        s_and_b32 s{S_T2}, s{S_T0}, 7
        s_lshl_b32 s{S_T2}, s{S_T2}, 10
        s_add_u32 s{S_T2}, s{S_T2}, s{S_T1}
        v_add_u32 {vr(vm)}, s{S_T2}, v3
        s_bfe_u32 s{S_T2}, s{S_T0}, 0x20001
        s_lshl_b32 s{S_T2}, s{S_T2}, 9
        s_add_u32 s{S_T1}, s{S_T1}, s{S_T2}
        s_and_b32 s{S_T2}, s{S_T0}, 1
        s_lshl_b32 s{S_T2}, s{S_T2}, 3
        s_add_u32 s{S_T1}, s{S_T1}, s{S_T2}
        s_add_u32 s{S_T1}, s{S_T1}, {16*512}
        v_add_u32 {vr(ve)}, s{S_T1}, v2
        v_mov_b32 v1, {OOB}
        v_cndmask_b32 {vr(ve)}, {vr(ve)}, v1, s[{S_UP}:{S_UP+1}]
        """)
        if isb:
            for i in range(4):
                g(f"v_mov_b32 {vr(SENT+i)}, -1")

    def sentinels(self):
        g = self.g
        for vm, ve in ((VOB, VOB4), (VOA, VOA4)):
            g.emit(f"buffer_store_dwordx4 {vr(SENT,4)}, {vr(vm)}, {sr(SRD_WS,4)}, 0 offen sc1", tag="sent")
            g.emit(f"buffer_store_dwordx2 {vr(SENT,2)}, {vr(ve)}, {sr(SRD_WS,4)}, 0 offen sc1", tag="sent")

    def setup_wa(self):
        self.g(f"""
        v_lshrrev_b32 v2, 4, v0
        v_lshlrev_b32 v3, 2, v2
        v_sub_u32 v1, v0, v3
        v_and_b32 v1, 15, v1
        v_lshlrev_b32 v1, 4, v1
        s_lshl_b32 s{S_T0}, s{S_U}, 2
        v_add_u32 v2, s{S_T0}, v2
        v_mul_u32_u24 v2, 3840, v2
        s_lshl_b32 s{S_T2}, s{S_CT}, 8
        v_add3_u32 {vr(VWA0)}, v2, v1, s{S_T2}
        """)

    def setup_wo(self):
        g = self.g
        g(f"""
        s_mul_i32 s{S_T1}, s2, 13108
        s_lshr_b32 s{S_T1}, s{S_T1}, 16
        s_mul_i32 s{S_T2}, s{S_T1}, 5
        s_sub_u32 s{S_T0}, s2, s{S_T2}
        s_lshl_b32 s{S_T0}, s{S_T0}, 3
        s_add_u32 s{S_T0}, s{S_T0}, s{S_W}
        s_mul_i32 s{S_RPM}, s{S_T1}, 3277
        s_lshr_b32 s{S_RPM}, s{S_RPM}, 16
        s_mul_i32 s{S_T4}, s{S_RPM}, 20
        s_sub_u32 s{S_T1}, s{S_T1}, s{S_T4}
        s_mul_i32 s{S_T3}, s{S_T0}, 13108
        s_lshr_b32 s{S_T3}, s{S_T3}, 16
        s_mul_i32 s{S_T4}, s{S_T3}, 5
        s_sub_u32 s{S_T2}, s{S_T0}, s{S_T4}
        s_lshl_b32 s{S_T4}, s{S_RPM}, 3
        s_add_u32 s{S_T4}, s{S_T4}, s{S_T3}
        s_mul_i32 s{S_RPD}, s{S_T4}, 102400
        s_mul_i32 s{S_T3}, s{S_T3}, 160
        s_lshl_b32 s{S_T4}, s{S_T2}, 10
        s_add_u32 s{S_RPD}, s{S_RPD}, s{S_T4}
        s_lshl_b32 s{S_T2}, s{S_T2}, 5
        v_mov_b32 v1, s{S_T2}
        s_cmp_ge_u32 s{S_T1}, 10
        s_cselect_b32 s{S_T2}, 1, 0
        s_mul_i32 s{S_T4}, s{S_T2}, 19
        s_lshl_b32 s{S_T5}, s{S_T1}, 1
        s_sub_u32 s{S_T5}, s{S_T5}, s{S_T4}
        s_mul_i32 s{S_T5}, s{S_T5}, 5120
        s_add_u32 s{S_RPD}, s{S_RPD}, s{S_T5}
        s_add_u32 s{S_RPD}, s{S_RPD}, {WS_WO}
        s_mul_i32 s{S_T2}, s{S_T1}, 13108
        s_lshr_b32 s{S_T2}, s{S_T2}, 16
        s_mul_i32 s{S_T4}, s{S_T2}, 5
        s_sub_u32 s{S_T1}, s{S_T1}, s{S_T4}
        s_mul_i32 s{S_T2}, s{S_T2}, 160
        s_mul_i32 s{S_T4}, s{S_T1}, 40
        s_cmp_eq_u32 s{S_T1}, 4
        s_cselect_b64 s[{S_M2}:{S_M2+1}], -1, 0
        s_cselect_b32 s{S_T4}, 0, s{S_T4}
        s_add_u32 s{S_T2}, s{S_T2}, s{S_T4}
        s_mul_i32 s{S_T2}, s{S_T2}, 1280
        s_add_u32 s{S_T2}, s{S_T2}, s{S_T3}
        """)
        for u in range(2048):
            assert (u * 13108) >> 16 == u // 5
        for u in range(410):
            assert (u * 3277) >> 16 == u // 20
        g(f"""
        s_movk_i32 s{S_RPT}, {8*1280}
        s_cmp_eq_u32 s{S_T1}, 4
        s_cselect_b32 s{S_RPT}, {20*1280}, s{S_RPT}
        v_lshrrev_b32 v2, 4, v0
        v_lshrrev_b32 v3, 1, v2
        v_mul_u32_u24 v3, 20, v3
        v_and_b32 {vr(VPOLL)}, 1, v2
        v_lshl_add_u32 v3, {vr(VPOLL)}, 2, v3
        v_mul_u32_u24 v2, 40, v2
        v_add_u32 v2, 16, v2
        v_cndmask_b32 v2, v3, v2, s[{S_M2}:{S_M2+1}]
        v_mul_u32_u24 v2, 1280, v2
        v_and_b32 v3, 15, v0
        v_lshl_add_u32 v2, v3, 1, v2
        v_add3_u32 {vr(VWOM)}, v2, v1, s{S_T2}
        """)

    def repack_load(self, t):
        g = self.g
        if t == 0:
            g(f"""
            s_cmp_eq_u32 s{S_RPM}, 0
            s_cselect_b64 s[{SRD_S2}:{SRD_S2+1}], s[{SRD_WOB}:{SRD_WOB+1}], s[{SRD_WOA}:{SRD_WOA+1}]
            s_mov_b32 s{SRD_S2+2}, 819200
            s_mov_b32 s{SRD_S2+3}, 0x20000
            """)
        for r in range(4):
            g.emit(f"buffer_load_ushort {vr(RPK+4*t+r)}, {vr(VWOM)}, {sr(SRD_S2,4)}, {f's{S_RPT}' if t else '0'} offen offset:{1280*r}")

    def repack_store(self):
        g = self.g
        le = g.label("Lrp")
        g.vwait(vr(RPK, 8))
        for i in range(4):
            g(f"v_lshl_or_b32 {vr(RPK+i)}, {vr(RPK+2*i+1)}, 16, {vr(RPK+2*i)}")
        g(f"s_cmp_lt_u32 s{S_RPM}, 2\ns_cbranch_scc0 {le}")
        g.emit(f"buffer_store_dwordx4 {vr(RPK,4)}, {vr(VL16)}, {sr(SRD_WS,4)}, s{S_RPD} offen sc1", cls="extra", tag="rps")
        g(f"{le}:")

    def lds_addr_x(self, dst, rowblk_setup, perm):
        g = self.g
        g(rowblk_setup)
        g(f"v_and_b32 v1, 31, v0")
        if perm:
            g(f"""
            v_bfe_u32 v2, v1, 2, 1
            v_bfe_u32 v3, v1, 3, 1
            v_and_b32 v1, 0x13, v1
            v_lshl_or_b32 v1, v2, 3, v1
            v_lshl_or_b32 v1, v3, 2, v1
            """)
        g(f"""
        v_bfe_u32 v2, v1, 1, 3
        v_lshrrev_b32 v3, 5, v0
        v_xor_b32 v2, v2, v3
        v_lshlrev_b32 v2, 4, v2
        s_lshl_b32 s{S_T0}, s{S_T0}, 12
        v_lshl_add_u32 v1, v1, 7, v2
        v_add_u32 {vr(dst)}, s{S_T0}, v1
        v_xor_b32 {vr(dst+1)}, 32, {vr(dst)}
        v_xor_b32 {vr(dst+2)}, 64, {vr(dst)}
        v_xor_b32 {vr(dst+3)}, 0x60, {vr(dst)}
        """)

    def quad_regs(self):
        self.g(f"""
        v_bfe_u32 v1, v0, 2, 2
        v_lshrrev_b32 v2, 5, v0
        v_bfe_u32 v3, v0, 4, 1
        v_and_b32 {vr(VPOLL)}, 3, v0
        v_lshl_add_u32 v3, v3, 2, {vr(VPOLL)}
        """)

    def rd(self, op, dst, n, areg, addr):
        w = addr // 65536 * 65536
        if self.win[areg] != w:
            d = w - self.win[areg]
            self.g(f"v_add_u32 {vr(areg)}, 0x{d & 0xffffffff:x}, {vr(areg)}")
            self.win[areg] = w
        self.g(f"{op} {vr(dst, n)}, {vr(areg)} offset:{addr - w}")

    def fine_stamp(self, c, cons=False):
        if self.opt.get("stamps") and self.opt.get("fine") and not cons:
            self.nstamp = 3 + c
            self.stamp(f"b{c}")

    def isB(self, c):
        return (c < 10) == (self.order == "BA")

    def rot(self, dst):
        g = self.g
        d = self.opt.get("dual", 0)
        if d == 2 and self.order == "AB":
            g(f"s_lshr_b32 s{dst}, s2, 7\ns_mul_i32 s{dst}, s{dst}, 5")
            return
        if d == 1:
            if self.order == "BA":
                g(f"s_bfe_u32 s{dst}, s2, 0x20004\ns_lshr_b32 s{S_T2}, s2, 7")
            else:
                g(f"s_lshr_b32 s{dst}, s2, 7\ns_lshl_b32 s{dst}, s{dst}, 1\ns_bfe_u32 s{S_T2}, s2, 0x10005\ns_add_u32 s{dst}, s{dst}, s{S_T2}\ns_bfe_u32 s{S_T2}, s2, 0x10004")
            g(f"s_mul_i32 s{S_T2}, s{S_T2}, 5")
        else:
            g(f"s_lshr_b32 s{dst}, s2, 6\ns_bfe_u32 s{S_T2}, s2, 0x30003\ns_mul_i32 s{S_T2}, s{S_T2}, 5\ns_lshr_b32 s{S_T2}, s{S_T2}, 2")
        g(f"""
        s_mul_i32 s{dst}, s{dst}, 5
        s_lshr_b32 s{dst}, s{dst}, 1
        s_add_u32 s{dst}, s{dst}, s{S_T2}
        s_sub_u32 s{S_T2}, s{dst}, 10
        s_cselect_b32 s{dst}, s{dst}, s{S_T2}
        """)

    def next_kc(self, dst, src):
        self.g(f"s_add_u32 s{dst}, s{src}, 1\ns_cmp_eq_u32 s{dst}, 10\ns_cselect_b32 s{dst}, 0, s{dst}")

    def ld(self, c, what, kc):
        g = self.g
        base = (c % 5) * SLOT
        tag = f"c{c}"

        def go(srd, va, m0, add, cls=None):
            g(f"s_add_u32 m0, s{m0[0]}, {m0[1]}\ns_add_u32 s{S_SOFF}, s{S_T5}, {add}")
            g.emit(f"buffer_load_dwordx4 {vr(va)}, {sr(srd,4)}, s{S_SOFF} offen lds", tag=tag, cls=cls)
            if cls is None and self.after_piece:
                self.after_piece.pop(0)()

        if what == "x":
            g(f"s_lshl_b32 s{S_T5}, s{kc}, 7")
            for i in range(2 if self.isB(c) else 4):
                go(SRD_XB if self.isB(c) else SRD_XA, VX, (S_UK, base + 4096 * i), 32 * 1280 * i)
        elif what == "w" and self.isB(c):
            g(f"s_mul_i32 s{S_T5}, s{kc}, {64*1280}")
            for i in range(2):
                go(SRD_WQ, VWQ1, (S_UK, base + 8192 + 5120 * i), 32 * 1280 * i)
        elif what == "w":
            g(f"s_mul_i32 s{S_T5}, s{kc}, {64*3840}")
            for i in range(4):
                go(SRD_WQKV, VWA0, (S_UK, base + 16384 + 4096 * i), 16 * 3840 * i)
        elif self.order == "AB":
            lab = g.label("Le1")
            g(f"s_cmp_lt_u32 s{S_U}, 2\ns_cbranch_scc0 {lab}\ns_mul_i32 s{S_T5}, s{kc}, s{S_STEP2}")
            go(SRD_S2, VS2, (S_M0E, base), 0, "extra")
            g(f"{lab}:")
        else:
            g(f"s_mul_i32 s{S_T5}, s{kc}, s{S_STEP2}")
            go(SRD_S2, VS2, (S_M0E, base), 0)
            lab = g.label("Le1")
            g(f"s_cmp_eq_u32 s{S_W}, 6\ns_cbranch_scc0 {lab}")
            go(SRD_S2, VS2, (S_M0E, base + 2048), 2048, "extra")
            g(f"{lab}:")

    def setup_vx(self, rb, sh):
        self.g(f"""
        s_lshl_b32 s{S_T0}, s{S_U}, 3
        v_lshrrev_b32 v1, 3, v0
        v_add_u32 v1, s{S_T0}, v1
        v_lshrrev_b32 v2, 1, v1
        v_xor_b32 v2, v2, v0
        v_and_b32 v2, 7, v2
        v_lshlrev_b32 v2, 4, v2
        s_lshl_b32 s{S_T1}, s{rb}, {sh}
        v_add_u32 v1, s{S_T1}, v1
        v_mul_u32_u24 v1, 1280, v1
        v_add_u32 {vr(VX)}, v1, v2
        """)

    def setup_wq(self):
        g = self.g
        for srd, n in ((SRD_XB, 2621440), (SRD_WQ, 819200)):
            g(f"s_mov_b32 s{srd+2}, {n}\ns_mov_b32 s{srd+3}, 0x20000")
        g(f"""
        s_mul_i32 s{S_T2}, s{S_HG}, 160
        s_lshl_b32 s{S_T0}, s{S_U}, 6
        s_mul_i32 s{S_T1}, s{S_U}, 320
        s_add_u32 s{S_T1}, s{S_T1}, 256
        """)
        for dst, base in ((VWQ1, S_T0), (VS2, S_T1)):
            g(f"v_add_u32 v1, s{base}, v0")
            g(f"v_mul_u32_u24 v2, 6554, v1\nv_lshrrev_b32 v2, 16, v2")
            g(f"""
            v_mul_u32_u24 v3, 10, v2
            v_sub_u32 v1, v1, v3
            v_lshlrev_b32 v1, 4, v1
            v_and_b32 v3, 1, v2
            v_lshlrev_b32 v3, 2, v3
            v_bfe_u32 {vr(T0)}, v2, 1, 2
            v_and_b32 v2, 0xfff8, v2
            v_or3_b32 v2, v2, v3, {vr(T0)}
            v_mul_u32_u24 v2, 1280, v2
            v_add3_u32 {vr(dst)}, v1, v2, s{S_T2}
            """)
        g(f"""
        s_sub_u32 s{S_T0}, s{S_UK}, 2048
        v_add_u32 v1, s{S_T0}, {vr(VL16)}
        s_add_u32 s{S_T0}, s{S_T0}, 18432
        s_mul_i32 s{S_M0E}, s{S_U}, 5120
        s_add_u32 s{S_M0E}, s{S_M0E}, {8192+4096}
        s_cmp_lt_u32 s{S_U}, 2
        s_cselect_b64 s[{S_M2}:{S_M2+1}], -1, 0
        s_cselect_b32 s{S_M0E}, s{S_M0E}, s{S_T0}
        s_movk_i32 s{S_T0}, 2560
        s_movk_i32 s{S_T1}, 25600
        s_cselect_b32 s{S_STEP2}, {64*1280}, s{S_T0}
        s_cselect_b32 s{SRD_S2+2}, 819200, s{S_T1}
        s_mov_b32 s{SRD_S2+3}, 0x20000
        v_cndmask_b32 {vr(VS2)}, v1, {vr(VS2)}, s[{S_M2}:{S_M2+1}]
        """)

    def select_s2(self):
        self.g(f"""
        s_cmp_eq_u32 s{S_ISV}, 0
        s_cselect_b64 s[4:5], s[4:5], s[6:7]
        s_cmp_lt_u32 s{S_U}, 2
        s_cselect_b64 s[{SRD_S2}:{SRD_S2+1}], s[{SRD_WQ}:{SRD_WQ+1}], s[4:5]
        """)

    def loader_head(self):
        g = self.g
        self.rot(S_KCS)
        self.next_kc(S_KCS + 1, S_KCS)
        self.next_kc(S_KCS + 2, S_KCS + 1)
        self.nstamp = 0
        if self.order == "BA":
            self.setup_vx(S_RBB, 6)
            self.setup_wq()
            g("s_waitcnt lgkmcnt(0)")
            self.select_s2()
            self.stamp('karg')
            for c, what in ((0, "x"), (0, "w"), (0, "e"), (1, "x")):
                self.ld(c, what, S_KCS + c)
            self.common_setup()
            self.setup_wa()
            later = ((2, "x"), (1, "w"), (1, "e"))
        else:
            self.common_setup()
            self.setup_vx(S_RBA, 7)
            self.setup_wa()
            g("s_waitcnt lgkmcnt(0)")
            self.stamp('karg')
            for c, what in ((0, "w"), (0, "x")):
                self.ld(c, what, S_KCS + c)
            self.setup_wq()
            self.select_s2()
            later = ((1, "w"),)
        for c in range(3, 10):
            self.next_kc(S_KCS + c, S_KCS + c - 1)
        for c, what in later:
            self.ld(c, what, S_KCS + c)
        self.epoch_load()
        self.stamp('setup')
        self.stamp('issued')

    def sched(self, c):
        if self.order == "AB":
            return "1x 2w 2x" if c == 0 else f"{c+2}w {c+2}x" if c < 8 else f"{c+2}x {c+2}w {c+2}e" if c < 18 else ""
        if self.opt.get("dual", 0) and c >= 7:
            if self.opt.get("pre", 1):
                return {7: "9x 9w 9e 10w 10x", 8: "11w 11x", 9: "12w 12x", 10: ""}.get(c, f"{c+2}w {c+2}x" if c < 18 else "")
            return "9x 9w 9e" if c == 7 else f"{c+2}w {c+2}x" if c < 18 else ""
        return {0: "2w 2e", 7: "9x 9w 9e 10w 10x", 8: "11w", 9: "12w 11x", 10: "12x"}.get(
            c, f"{c+2}x {c+2}w {c+2}e" if c < 7 else f"{c+2}w {c+2}x" if c < 18 else "")

    def loader_chunk(self, c):
        g = self.g
        for item in self.sched(c).split():
            n, what = int(item[:-1]), item[-1]
            if n == 10 and what == ("w" if self.order == "BA" else "x"):
                a, b = ((S_RBA, S_RBB), (S_RBB, S_RBA))[self.order == "AB"]
                g(f"s_lshl_b32 s{S_T0}, s{S_RBA}, 1\ns_sub_u32 s{S_T0}, s{S_T0}, s{S_RBB}\ns_mul_i32 s{S_T0}, s{S_T0}, {64*1280}")
                g(f"v_add_u32 {vr(VX)}, s{S_T0}, {vr(VX)}" if self.order == "BA" else f"v_subrev_u32 {vr(VX)}, s{S_T0}, {vr(VX)}")
                if self.opt.get("dual", 0) == 2 and self.order == "BA":
                    o = self.opt
                    tab = o.get("o1", 5) << 4 | o.get("o2", 7) << 8 | o.get("o3", 8) << 12
                    g(f"""
                    s_lshr_b32 s{S_T0}, s2, 5
                    s_bfe_u32 s{S_T1}, s2, 0x10002
                    s_lshl_b32 s{S_T1}, s{S_T1}, 1
                    s_add_u32 s{S_T0}, s{S_T0}, s{S_T1}
                    s_sub_u32 s{S_T0}, s{S_RBA}, s{S_T0}
                    s_and_b32 s{S_T0}, s{S_T0}, 3
                    s_lshl_b32 s{S_T0}, s{S_T0}, 2
                    s_lshr_b32 s{S_T0}, {tab}, s{S_T0}
                    s_and_b32 s{S_T0}, s{S_T0}, 15
                    s_lshr_b32 s{S_KCS}, s2, 7
                    s_mul_i32 s{S_KCS}, s{S_KCS}, 5
                    s_add_u32 s{S_KCS}, s{S_KCS}, s{S_T0}
                    s_sub_u32 s{S_T0}, s{S_KCS}, 10
                    s_cselect_b32 s{S_KCS}, s{S_KCS}, s{S_T0}
                    """)
                    for k in range(1, 10):
                        self.next_kc(S_KCS + k, S_KCS + k - 1)
                if not self.opt.get("dual", 0):
                    g(f"s_and_b32 s{S_T0}, s{S_HP}, 7\ns_mul_i32 s{S_T2}, s{S_T0}, 5\ns_lshr_b32 s{S_T2}, s{S_T2}, 2\ns_and_b32 s{S_KCS}, s{S_RBA}, 3")
                    g(f"s_mul_i32 s{S_KCS}, s{S_KCS}, 5\ns_lshr_b32 s{S_KCS}, s{S_KCS}, 1\ns_add_u32 s{S_KCS}, s{S_KCS}, s{S_T2}\ns_sub_u32 s{S_T2}, s{S_KCS}, 10\ns_cselect_b32 s{S_KCS}, s{S_KCS}, s{S_T2}")
                    for k in range(1, 10):
                        self.next_kc(S_KCS + k, S_KCS + k - 1)
            self.ld(n, what, S_KCS + n % 10)

    def kv_reads(self, s, kind):
        c, ks = divmod(s, 4)
        base = (c % 5) * SLOT
        f = FB + 8 * ks
        self.rd("ds_read_b128", f, 4, AXK + ks, base)
        for t in range(2):
            self.rd("ds_read_b64_tr_b16", f + 4 + 2 * t, 2, AWK, base + (16 * ks + 4 * t) * 40)

    def loaderB(self, kind):
        g = self.g
        if kind != "N":
            self.lds_addr_x(AXK, f"s_mov_b32 s{S_T0}, s{S_RHKV}", kind == "V")
            self.quad_regs()
            g(f"""
            v_min_u32 v3, 4, v3
            v_lshlrev_b32 v3, 3, v3
            v_lshl_add_u32 v1, v2, 3, v1
            v_mul_u32_u24 v1, 40, v1
            v_add_u32 v1, 18432, v1
            v_add_u32 {vr(AWK)}, v1, v3
            """)
        extras = {2: [self.epoch_tag]}
        for c in range(10):
            g.vwait(f"c{c}")
            g("s_barrier")
            self.fine_stamp(c)
            if kind != "N":
                for ks in range(4):
                    self.kv_reads(4 * c + ks, kind)
            def kv_mm(ks, c=c):
                f = FB + 8 * ks
                g.lwait(vr(f, 8))
                a, b = (f + 4, f) if kind == "K" else (f, f + 4)
                g(f"v_mfma_f32_32x32x16_bf16 {vr(ACK,16)}, {vr(a,4)}, {vr(b,4)}, {'0' if c + ks == 0 else vr(ACK,16)}")

            mms = [lambda ks=ks: kv_mm(ks) for ks in range(4)] if kind != "N" else []
            if self.opt.get("kvil", 1):
                self.after_piece = mms
            self.loader_chunk(c)
            while mms:
                mms.pop(0)()
            for fn in extras.get(c, []):
                fn()
        if kind != "N":
            KT = 232
            g(f"s_mul_i32 s{S_T0}, s{S_RBB}, 5376\ns_add_u32 s{S_T0}, s{S_T0}, {WS_KVB}")
            if kind == "K":
                g(f"""
                s_lshl_b32 s{S_T1}, s{S_RHKV}, 10
                s_add_u32 s{S_T1}, s{S_T1}, s{S_T0}
                v_add_u32 v1, s{S_T1}, {vr(VL16)}
                s_lshl_b32 s{S_T1}, s{S_RHKV}, 8
                s_add_u32 s{S_T1}, s{S_T1}, s{S_T0}
                s_add_u32 s{S_T1}, s{S_T1}, 2048
                v_and_b32 v2, 31, v0
                v_lshlrev_b32 v2, 3, v2
                v_add_u32 v2, s{S_T1}, v2
                s_nop 0
                """)
                for i in range(6):
                    g(f"v_cvt_pk_bf16_f32 {vr(KT+i)}, {vr(ACK+2*i)}, {vr(ACK+2*i+1)}")
                g.emit(f"buffer_store_dwordx4 {vr(KT,4)}, v1, {sr(SRD_WS,4)}, 0 offen sc1", tag="kvb", cls="extra")
                g.emit(f"buffer_store_dwordx2 {vr(KT+4,2)}, v2, {sr(SRD_WS,4)}, 0 offen sc1", tag="kvb", cls="extra")
            else:
                g(f"""
                s_mul_i32 s{S_T1}, s{S_RHKV}, 1408
                s_add_u32 s{S_T1}, s{S_T1}, s{S_T0}
                s_add_u32 s{S_T1}, s{S_T1}, 2560
                v_and_b32 v2, 31, v0
                v_lshrrev_b32 v3, 5, v0
                v_mul_u32_u24 v3, 352, v3
                v_lshl_add_u32 v1, v2, 4, v3
                v_add_u32 v1, s{S_T1}, v1
                v_cmp_eq_u32 s[{S_M2}:{S_M2+1}], 20, v2
                v_cmp_lt_u32 s[{S_M3}:{S_M3+1}], 21, v2
                v_mov_b32 {vr(VPOLL)}, {OOB}
                v_mov_b32 v3, 0x3f803f80
                v_cndmask_b32 v1, v1, {vr(VPOLL)}, s[{S_M3}:{S_M3+1}]
                v_cndmask_b32 v3, 0, v3, s[{S_M2}:{S_M2+1}]
                v_cmp_lt_u32 s[{S_M2}:{S_M2+1}], 19, v2
                """)
                for i in range(8):
                    g(f"v_cvt_pk_bf16_f32 {vr(KT+i)}, {vr(ACK+2*i)}, {vr(ACK+2*i+1)}")
                for i in range(8):
                    g(f"v_cndmask_b32 {vr(KT+i)}, {vr(KT+i)}, v3, s[{S_M2}:{S_M2+1}]")
                g.emit(f"buffer_store_dwordx4 {vr(KT,4)}, v1, {sr(SRD_WS,4)}, 0 offen sc1", tag="kvb", cls="extra")
                g.emit(f"buffer_store_dwordx4 {vr(KT+4,4)}, v1, {sr(SRD_WS,4)}, 0 offen offset:704 sc1", tag="kvb", cls="extra")

    def q_xchg(self, write, q16, q4, a16, a4):
        g = self.g
        g(f"s_add_u32 s{S_T0}, s{S_UK}, {a16}\nv_add_u32 v1, s{S_T0}, {vr(VL16)}\nv_lshlrev_b32 v2, 3, v0\ns_add_u32 s{S_T0}, s{S_UK}, {a4}\nv_add_u32 v2, s{S_T0}, v2")
        if write:
            g(f"ds_write_b128 v1, {vr(q16,4)}\nds_write_b64 v2, {vr(q4,2)}")
        else:
            g(f"ds_read_b128 {vr(q16,4)}, v1\nds_read_b64 {vr(q4,2)}, v2")
        g.emit("s_waitcnt lgkmcnt(0)")

    def loader_late(self, c0):
        return {c0: [lambda: self.setup_oaddr(True)], c0 + 1: [lambda: self.setup_oaddr(False)], c0 + 2: [self.attnA_setup],
                c0 + 3: [self.of_addr], c0 + 4: [self.tail_setup]}

    def set_f1(self, n):
        g = self.g
        lab = g.label("Lf1")
        g(f"s_cmp_eq_u32 s{S_W}, 7\ns_cbranch_scc0 {lab}")
        if n is not None:
            g.emit(f"s_waitcnt vmcnt({n})", cls="nocount")
        g(f"s_lshl_b32 s{S_T0}, s2, 2\ns_add_u32 s{S_T0}, s{S_T0}, {WS_F1}\nv_mov_b32 v1, s{S_T0}")
        g.emit(f"buffer_store_dword {vr(V_TAG)}, v1, {sr(SRD_WS,4)}, 0 offen sc1", cls="extra")
        g(f"{lab}:")

    def loader_first_A(self):
        g = self.g
        for c in range(10):
            g.vwait(f"c{c}")
            g("s_barrier")
            self.fine_stamp(c)
            if c == 3:
                self.set_f1(None)
            self.loader_chunk(c)
            for fn in {2: [self.epoch_tag], **self.loader_late(3)}.get(c, []):
                fn()

    def loader_second(self):
        g = self.g
        BA = self.order == "BA"
        F1_AT = self.opt.get("f1at", 11)
        KV_AT = self.opt.get("kvat", 18)
        nun = 0
        for c in range(10, 20):
            g.vwait(f"c{c}")
            g("s_barrier")
            self.fine_stamp(c)
            if c == 11 and BA:
                self.q_xchg(False, QB16, QB4, 4 * SLOT + 24576, 4 * SLOT + 28672)
            if c == F1_AT and BA:
                self.set_f1(nun)
            self.loader_chunk(c)
            nun += 4 * len(self.sched(c).split())
            for cc in range(3):
                if c == max(KV_AT, 17 + cc) - (cc == 1 and KV_AT == 19):
                    for i in range(6):
                        lab = None
                        if i == 5:
                            lab = g.label("Lkv")
                            g(f"s_cmp_eq_u32 s{S_U}, 0\ns_cbranch_scc0 {lab}")
                        g(f"s_add_u32 m0, s{S_UK}, {RING[cc] + i*4096}\ns_add_u32 s{S_SOFF}, s{S_UK}, {WS_KVB + cc*21504 + i*4096}")
                        g.emit(f"buffer_load_dwordx4 {vr(VL16)}, {sr(SRD_WS,4)}, s{S_SOFF} offen sc1 lds", tag=f"kvb{cc}", cls="extra" if lab else None)
                        if lab:
                            g(f"{lab}:")
            for fn in self.loader_late(13).get(c, []) if BA else []:
                fn()
            if c == 19:
                self.setup_wo()
                self.setup_masks()
                g(f"s_mov_b32 s{S_TP}, 0")
                for r in EPA:
                    g(f"v_mov_b32 {vr(r)}, {OOB}")
        self.nstamp = 23
        self.stamp('projA_end')
        g.vwait("kvb1")
        g("s_barrier")
        if not BA:
            self.q_xchg(False, QB16, QB4, 2 * SLOT + 24576, 2 * SLOT + 28672)

    def cbuf(self, s):
        if self.opt.get("db", 3) == 3 and s < 40:
            return (FB, FB + 12, FB + 24, FB + 36)[s % 4]
        return FB + 16 * (s % 3)

    def c_reads(self, s):
        if s >= 80:
            return
        c, ks = divmod(s, 4)
        base = (c % 5) * SLOT
        f = self.cbuf(s)
        if self.isB(c):
            self.rd("ds_read_b128", f, 4, AXB + ks, base)
            for t in range(2):
                self.rd("ds_read_b64_tr_b16", f + 8 + 2 * t, 2, AWQ, base + (16 * ks + t) * 160)
            self.rd("ds_read_b128", f + 4, 4, AXB + ks, base + 4096)
        else:
            self.rd("ds_read_b128", f, 4, AXA + ks, base)
            for t in range(2):
                self.rd("ds_read_b64_tr_b16", f + 8 + 2 * t, 2, AWX, base + (16 * ks + 4 * t) * 256)
            self.rd("ds_read_b128", f + 4, 4, AXA + ks, base + 4096)
            for t in range(2):
                self.rd("ds_read_b64_tr_b16", f + 12 + 2 * t, 2, AWY, base + (16 * ks + 4 * t) * 256)

    def consumer(self):
        g = self.g
        g("L_cons:")
        self.common_setup()
        if self.opt.get("tlb"):
            lab = g.label("Ltlb")
            g(f"s_cmp_eq_u32 s{S_W}, 0\ns_cbranch_scc0 {lab}\ns_waitcnt lgkmcnt(0)\nv_lshlrev_b32 v1, 21, v0")
            if self.opt["tlb"] == 2:
                g(f"s_lshr_b32 s{S_T0}, s2, 3\nv_cmp_ne_u32 s[{S_M2}:{S_M2+1}], s{S_T0}, v0\nv_mov_b32 v2, {OOB}\ns_nop 0\nv_cndmask_b32 v1, v1, v2, s[{S_M2}:{S_M2+1}]")
            for srd in (SRD_WS, SRD_XA, SRD_WQKV, SRD_WOA, SRD_WOB, SRD_OUT):
                g.lines.append(f"    buffer_load_dword v183, v1, {sr(srd,4)}, 0 offen")
            g(f"{lab}:")
        self.lds_addr_x(AXB, f"s_mov_b32 s{S_T0}, 0", False)
        self.lds_addr_x(AXA, f"s_and_b32 s{S_T0}, s{S_W}, 2", False)
        self.quad_regs()
        g(f"""
        v_min_u32 {vr(T0)}, 4, v3
        v_lshlrev_b32 {vr(T0)}, 3, {vr(T0)}
        v_lshl_add_u32 {vr(T1)}, v2, 2, v1
        v_mul_u32_u24 {vr(T1)}, 320, {vr(T1)}
        s_mul_i32 s{S_T0}, s{S_U}, 40
        s_add_u32 s{S_T0}, s{S_T0}, 8192
        v_add3_u32 {vr(AWQ)}, {vr(T1)}, {vr(T0)}, s{S_T0}
        v_lshl_add_u32 {vr(T1)}, v2, 3, v1
        v_lshlrev_b32 {vr(T1)}, 8, {vr(T1)}
        v_add_u32 {vr(T1)}, 16384, {vr(T1)}
        v_lshlrev_b32 v1, 6, v1
        s_and_b32 s{S_T0}, s{S_W}, 1
        s_lshl_b32 s{S_T1}, s{S_T0}, 7
        v_lshlrev_b32 {vr(T0)}, 3, v3
        v_add3_u32 v2, {vr(T0)}, v1, s{S_T1}
        v_and_b32 v2, 255, v2
        v_add_u32 {vr(AWX)}, {vr(T1)}, v2
        v_add_u32 v2, 64, v2
        v_and_b32 v2, 255, v2
        v_add_u32 {vr(AWY)}, {vr(T1)}, v2
        """)
        self.setup_masks()
        self.setup_epa()
        self.setup_wo()
        self.setup_oaddr(True)
        self.setup_oaddr(False)
        self.late_setup()
        g("s_waitcnt lgkmcnt(0)")
        self.nstamp = 0
        self.stamp('karg')
        self.stamp('setup')
        self.stamp('issued')
        if self.opt.get("dual"):
            g(f"s_cmp_eq_u32 s{S_AB}, 1\ns_cbranch_scc1 L_cons_AB")
        for self.order in ("BA", "AB") if self.opt.get("dual") else ("BA",):
            g.lq, g.vq, self.win = [], [], {r: 0 for r in range(64, 84)}
            if self.order == "AB":
                g("s_branch L_cons_end\nL_cons_AB:")
            self.consumer_steps()
        g("L_cons_end:")
        self.consumer_epilogue()

    def consumer_steps(self):
        g = self.g
        BA = self.order == "BA"
        QS = (4 if BA else 2) * SLOT

        def q_epilogue():
            for rh, dst in ((0, [QB16 + n for n in range(6)]), (1, [116, 117, 118, 119, 82, 83])):
                for i in range(0, 12, 2):
                    g(f"v_pk_mul_f32 {vr(ACQ+16*rh+i,2)}, {vr(ACQ+16*rh+i,2)}, s[{S_C}:{S_C+1}] op_sel_hi:[1,0]")
                for i in range(6):
                    g(f"v_cvt_pk_bf16_f32 {vr(dst[i])}, {vr(ACQ+16*rh+2*i)}, {vr(ACQ+16*rh+2*i+1)}")
            g(f"s_add_u32 s{S_T0}, s{S_UK}, {QS+24576}\nv_add_u32 v1, s{S_T0}, {vr(VL16)}\nv_lshlrev_b32 v2, 3, v0\ns_add_u32 s{S_T0}, s{S_UK}, {QS+28672}\nv_add_u32 v2, s{S_T0}, v2")
            g.emit("ds_write_b128 v1, v[116:119]", tag="qx")
            g.emit("ds_write_b64 v2, v[82:83]", tag="qx")

        extras = {9: [self.epoch_load], 28: [self.epoch_tag], 41: [q_epilogue] if BA else [],
                  self.opt.get("pollat", 62): [lambda: self.poll_issue(WS_F1)]}
        D = self.opt.get("db", 3)
        ahead = {s: s + D for s in range(40 - D)}
        ahead.update({s: s + 2 for s in range(38, 78)})
        g("s_barrier")
        for k in range(D):
            self.c_reads(k)
        mf = "v_mfma_f32_32x32x16_bf16"
        for s in range(80):
            f = self.cbuf(s)
            if ahead.get(s, 1) % 4 == 0:
                if ahead[s] == 4 * self.opt.get("kvat", 18):
                    self.poll(WS_F1)
                g.lwait("qx")
                g("s_barrier")
            if self.isB(s // 4):
                seq = [(ACQ, f + 8, f), (ACQ + 16, f + 8, f + 4)]
            else:
                seq = [(AX, f + 8, f), (AX + 32, f + 8, f + 4), (AY, f + 12, f), (AY + 32, f + 12, f + 4)]
            for n, (acc, a, b) in enumerate(seq):
                g.lwait(vr(a, 4), vr(b, 4))
                g(f"{mf} {vr(acc,16)}, {vr(a,4)}, {vr(b,4)}, {'0' if s in (0, 40) else vr(acc,16)}")
                if n == len(seq) - 1 - (len(seq) == 4) * 3 and s in ahead and (s not in (38, 39) or D == 2):
                    self.c_reads(ahead[s])
                elif n == 1 and s in (38, 39) and D != 2:
                    pass
            if s in (38, 39) and D != 2:
                self.c_reads(ahead[s])
            for fn in extras.get(s, []):
                fn()
        if not BA:
            g("s_nop 10")
            q_epilogue()
            g.lwait("qx")
        g("s_barrier")

    def consumer_epilogue(self):
        g = self.g
        self.nstamp = 23
        self.stamp('projA_end')
        noscale = g.label("Lnoscale")
        g(f"s_cmp_lt_u32 s{S_CT}, 5\ns_cbranch_scc0 {noscale}\ns_nop 8")
        for i in range(0, 64, 2):
            g(f"v_pk_mul_f32 {vr(AX+i,2)}, {vr(AX+i,2)}, s[{S_C}:{S_C+1}] op_sel_hi:[1,0]")
        g(f"{noscale}:\ns_nop 9")
        for mi in range(2):
            for ni in range(2):
                for gq in range(4):
                    src = AX + 16 * ni + 32 * mi + 4 * gq
                    d = QKV + 2 * (8 * mi + 4 * ni + gq)
                    g(f"v_cvt_pk_bf16_f32 {vr(d)}, {vr(src)}, {vr(src+1)}\nv_cvt_pk_bf16_f32 {vr(d+1)}, {vr(src+2)}, {vr(src+3)}")
        self.qkv_stores(range(self.opt.get("qnow", 0)), False)

    def qkv_stores(self, which, guard=True):
        g = self.g
        lab = g.label("Lqs")
        if guard:
            g(f"s_cmp_lt_u32 s{S_QS}, 4\ns_cbranch_scc0 {lab}")
        for n in which:
            g.emit(f"buffer_store_dwordx2 {vr(QKV+2*n,2)}, {vr(EPA[n % 8])}, {sr(SRD_WS,4)}, {'0' if n < 8 else f's{S_TP}'} offen sc1", tag="kva", cls="extra")
        g(f"{lab}:")

    def setup_epa(self):
        g = self.g
        g(f"""
        s_mul_i32 s{S_T0}, s{S_CT}, 13108
        s_lshr_b32 s{S_T0}, s{S_T0}, 16
        s_mul_i32 s{S_T1}, s{S_T0}, 5
        s_sub_u32 s{S_T1}, s{S_CT}, s{S_T1}
        s_lshl_b32 s{S_T1}, s{S_T1}, 1
        s_and_b32 s{S_T2}, s{S_W}, 1
        s_add_u32 s{S_T1}, s{S_T1}, s{S_T2}
        s_lshl_b32 s{S_T1}, s{S_T1}, 4
        s_mul_i32 s{S_T5}, s{S_T0}, 1440
        s_add_u32 s{S_T5}, s{S_T5}, {WS_KVA - 1440}
        s_movk_i32 s{S_T3}, 288
        s_movk_i32 s{S_TP}, {KPITCH}
        s_cmp_eq_u32 s{S_T0}, 0
        s_cselect_b32 s{S_T5}, {WS_QA}, s{S_T5}
        s_cselect_b32 s{S_T3}, 256, s{S_T3}
        s_cselect_b32 s{S_TP}, 1280, s{S_TP}
        s_lshl_b32 s{S_T2}, s{S_TP}, 6
        s_lshl_b32 s{S_T0}, s{S_RBA}, 2
        s_and_b32 s{S_T4}, s{S_W}, 2
        s_add_u32 s{S_T0}, s{S_T0}, s{S_T4}
        s_mul_i32 s{S_T0}, s{S_T0}, s{S_TP}
        s_add_u32 s{S_T5}, s{S_T5}, s{S_T0}
        v_and_b32 v2, 31, v0
        v_lshlrev_b32 v2, 3, v2
        v_add_u32 v2, s{S_T5}, v2
        v_lshrrev_b32 v3, 5, v0
        v_add_u32 v3, s{S_T1}, v3
        """)
        for n in range(8):
            g(f"""
            v_add_u32 v1, {2*n}, v3
            v_mul_u32_u24 {vr(T0)}, 13108, v1
            v_lshrrev_b32 {vr(T0)}, 16, {vr(T0)}
            v_mul_u32_u24 {vr(T1)}, 5, {vr(T0)}
            v_sub_u32 v1, v1, {vr(T1)}
            v_mad_u32_u24 v1, v1, s{S_T3}, v2
            v_mad_u32_u24 {vr(EPA[n])}, {vr(T0)}, s{S_T2}, v1
            """)

    def poll_issue(self, base):
        g = self.g
        lab = g.label("Lpi")
        g(f"s_cmp_eq_u32 s{S_W}, 0\ns_cbranch_scc0 {lab}\ns_mov_b32 s{S_SOFF}, {base}")
        g.emit(f"buffer_load_dwordx4 {vr(PL,4)}, {vr(VL16)}, {sr(SRD_WS,4)}, s{S_SOFF} offen sc1", cls="w0")
        g(f"{lab}:")

    def poll(self, base):
        g = self.g
        ok, again = g.label("Lok"), g.label("Lpoll")
        g(f"s_cmp_eq_u32 s{S_W}, 0\ns_cbranch_scc0 {ok}")
        saved = list(g.vq)
        g.vwait(vr(PL, 4))
        g.vq = [(q - {("v", PL + k) for k in range(4)}, c) for q, c in saved]
        g(f"""
        {again}:
        v_xor_b32 v1, {vr(V_TAG)}, {vr(PL)}
        v_xor_b32 v2, {vr(V_TAG)}, {vr(PL+1)}
        v_xor_b32 v3, {vr(V_TAG)}, {vr(PL+2)}
        v_or3_b32 v1, v1, v2, v3
        v_xor_b32 v2, {vr(V_TAG)}, {vr(PL+3)}
        v_or_b32 v1, v1, v2
        v_cmp_ne_u32 vcc, 0, v1
        s_nop 0
        s_cbranch_vccz {ok}
        s_sub_u32 s{S_SPIN}, s{S_SPIN}, 1
        s_cbranch_scc1 L_end
        s_mov_b32 s{S_SOFF}, {base}
        """)
        g.lines.append(f"    buffer_load_dwordx4 {vr(PL,4)}, {vr(VL16)}, {sr(SRD_WS,4)}, s{S_SOFF} offen sc1")
        g.lines.append("    s_waitcnt vmcnt(0)")
        g(f"s_branch {again}\n{ok}:")

    def kvb_piece(self, c, i, tag):
        g = self.g
        lab = None
        if i == 2:
            lab = g.label("Lkv")
            g(f"s_cmp_ge_u32 s{S_W}, 5\ns_cbranch_scc1 {lab}")
        g(f"s_add_u32 m0, s{S_WK}, {RING[c % 3] + i*8192}\ns_add_u32 s{S_SOFF}, s{S_WK}, {WS_KVB + c*21504 + i*8192}")
        g.emit(f"buffer_load_dwordx4 {vr(VL16)}, {sr(SRD_WS,4)}, s{S_SOFF} offen sc1 lds", tag=tag, cls="extra" if lab else None)
        if lab:
            g(f"{lab}:")

    def kvb_chunk(self, c, tag):
        for i in range(3):
            self.kvb_piece(c, i, tag)

    def wo_ops(self, mat, ks0, npair, addr, tag):
        ops = []
        n = 10 * npair
        for i in range(-(-n // 8)):
            def op(i=i):
                g = self.g
                lab = None
                if 8 * i + 8 > n:
                    lab = g.label("Lwo")
                    g(f"s_cmp_lt_u32 s{S_W}, {n - 8*i}\ns_cbranch_scc0 {lab}")
                g(f"s_add_u32 m0, s{S_WK}, {addr + 8192*i}\ns_add_u32 s{S_SOFF}, s{S_WOG}, {mat*819200 + ks0*10240 + 8192*i}")
                g.emit(f"buffer_load_dwordx4 {vr(VL16)}, {sr(SRD_WS,4)}, s{S_SOFF} offen sc1 lds", tag=tag, cls="extra" if lab else None)
                if lab:
                    g(f"{lab}:")
            ops.append(op)
        return ops

    def finish_o(self, O, vm, ve, check):
        g = self.g
        g(f"""
        v_mov_b32 v1, {vr(O+8)}
        v_mov_b32 v2, {vr(O+8)}
        s_nop 1
        v_permlane32_swap_b32 v1, v2
        """)
        skip = None
        if check == "A":
            good = g.label("Lgood")
            g(f"""
            s_mov_b32 s{S_T0}, {LMAXA}
            v_cmp_nge_f32 vcc, s{S_T0}, v2
            s_cmp_eq_u32 s{S_BIAS}, 0
            s_cbranch_scc1 {good}
            s_cbranch_vccnz L_A_fallback
            {good}:
            """)
        elif check:
            skip = g.label("Lbad")
            good = g.label("Lgood")
            g(f"""
            s_mov_b32 s{S_T0}, {LMAX}
            v_cmp_nge_f32 vcc, s{S_T0}, v2
            s_cmp_lg_u32 s{S_PASS}, 0
            s_cbranch_scc1 {good}
            s_cbranch_vccz {good}
            v_mov_b32 v1, {L_FLAG}
            v_mov_b32 v2, 1
            """)
            g.lines.append("    ds_write_b32 v1, v2")
            g(f"s_branch {skip}\n{good}:")
        g(f"v_rcp_f32 v2, v2\ns_nop 0")
        for i in range(0, 12, 2):
            g(f"v_pk_mul_f32 {vr(O+i,2)}, {vr(O+i,2)}, v[2:3] op_sel_hi:[1,0]")
        for i in range(6):
            g(f"v_cvt_pk_bf16_f32 {vr(O+i)}, {vr(O+2*i)}, {vr(O+2*i+1)}")
        for i in range(6):
            g(f"v_min_u32 {vr(O+i)}, -2, {vr(O+i)}")
        g.emit(f"buffer_store_dwordx4 {vr(O,4)}, {vr(vm)}, {sr(SRD_WS,4)}, 0 offen sc1", tag="ost")
        g.emit(f"buffer_store_dwordx2 {vr(O+4,2)}, {vr(ve)}, {sr(SRD_WS,4)}, 0 offen sc1", tag="ost")
        if skip:
            g(f"{skip}:")

    def attnB(self):
        g = self.g
        S = [64, 96]
        O, NM, KA, KB, K4, AK, AK4, AV = 128, 144, 160, 164, 168, 189, 190, 188
        SPLIT = 24
        V = [172, 176, 180, 184]

        def koff(i):
            return RING[(i // 4) % 3] + (i % 4) * 5376

        RKA = lambda i: g(f"ds_read_b128 {vr(KA,4)}, {vr(AK)} offset:{koff(i)}")
        RKB = lambda i: g(f"ds_read_b128 {vr(KB,4)}, {vr(AK)} offset:{koff(i)+1024}")
        RK4 = lambda i: g(f"ds_read_b64 {vr(K4,2)}, {vr(AK4)} offset:{koff(i)+2048}")
        RV = lambda j, i: g(f"ds_read_b128 {vr(V[j],4)}, {vr(AV)} offset:{koff(i)+2560+704*j}")
        M0 = lambda d, c: g(f"v_mfma_f32_32x32x16_bf16 {vr(d,16)}, {vr(KA,4)}, {vr(QB16,4)}, {c}")
        M1 = lambda d, c: g(f"v_mfma_f32_32x32x16_bf16 {vr(d+16,16)}, {vr(KB,4)}, {vr(QB16,4)}, {c}")
        B2 = lambda d: g(f"v_mfma_f32_32x32x4_2b_bf16 {vr(d,32)}, {vr(K4,2)}, {vr(QB4,2)}, {vr(d,32)}")
        SM = lambda j, s: g(f"v_smfmac_f32_32x32x32_bf16 {vr(O,16)}, {vr(V[j],4)}, {vr(s+8*j,8)}, {vr(IDX)}")

        def rowmax(src, n, acc, init):
            i = 0
            if init:
                g(f"v_max3_f32 {vr(acc)}, {vr(src)}, {vr(src+1)}, {vr(src+2)}")
                i = 3
            while i + 1 < n:
                g(f"v_max3_f32 {vr(acc)}, {vr(acc)}, {vr(src+i)}, {vr(src+i+1)}")
                i += 2
            if i < n:
                g(f"v_max_f32 {vr(acc)}, {vr(acc)}, {vr(src+i)}")

        g(f"""
        v_mov_b32 {vr(AK)}, {vr(VL16)}
        v_lshlrev_b32 {vr(AK4)}, 3, v0
        v_and_b32 v1, 31, v0
        v_min_u32 v1, 21, v1
        v_lshrrev_b32 v2, 5, v0
        v_mul_u32_u24 v2, 352, v2
        v_lshl_add_u32 {vr(AV)}, v1, 4, v2
        """)
        g(f"v_mov_b32 v1, {L_FLAG}\nv_mov_b32 v2, 0\nds_write_b32 v1, v2")
        if self.opt.get("prio"):
            lab = g.label("Lprio")
            g(f"s_cmp_ge_u32 s{S_W}, 4\ns_cbranch_scc{self.opt['prio'] & 1 ^ 1} {lab}\ns_setprio 1\n{lab}:")
        g(f"s_cmp_eq_u32 s{S_HP}, 15\ns_cselect_b32 s{S_QS}, 8, s{S_W}")
        self.stamp('attnB_start')
        RKA(0), RKB(0), RK4(0)
        Z = 224
        g(f"v_mov_b32 {vr(Z)}, 0x3f803f80")
        for r in (1, 3, 5, 6, 7):
            g(f"v_mov_b32 {vr(Z+r)}, 0")
        g.lwait(vr(KB, 4))
        M0(S[0], "0"), M1(S[0], "0")
        g.lwait(vr(K4, 2))
        RKA(1), RKB(1), RV(0, 0), RV(1, 0), RV(2, 0)
        g("s_nop 3")
        B2(S[0])
        RK4(1)
        g(f"v_mfma_f32_32x32x8_bf16 {vr(O,16)}, {vr(Z,2)}, {vr(Z+6,2)}, 0")
        g("s_nop 15\ns_nop 1")
        rowmax(S[0], 32, 1, True)
        g(f"""
        L_attnB_main:
        v_mov_b32 v2, v1
        s_nop 1
        v_permlane32_swap_b32 v1, v2
        s_nop 0
        v_max_f32 v2, v2, v1
        v_cvt_pk_bf16_f32 v1, 0, -v2
        v_sub_f32 v2, -v2, v1
        v_cvt_pk_bf16_f32 {vr(Z+2)}, v1, v2
        v_cndmask_b32 {vr(Z+4)}, {vr(Z+2)}, 0, s[{S_UP}:{S_UP+1}]
        s_nop 0
        v_mfma_f32_32x32x4_2b_bf16 {vr(S[0],32)}, {vr(Z,2)}, {vr(Z+2,2)}, {vr(S[0],32)}
        v_mfma_f32_32x32x8_bf16 {vr(NM,16)}, {vr(Z,2)}, {vr(Z+4,2)}, 0
        s_nop 15
        """)
        bg = self.attnB_background()
        for i in range(32):
            cur, nxt = S[i % 2], S[1 - i % 2]
            c, it = divmod(i, 4)
            E = lambda a, b: [g(f"v_exp_f32 {vr(cur+e)}, {vr(cur+e)}") for e in range(a, b)]
            qk = i + 1 < 32
            last = i + 1 in (32, SPLIT)
            rk = i + 2 < 32 and not last
            rv = not last
            if it == 2 and c >= 1:
                self.attnB_barrier(c)
            pa = self.opt.get("palt", 6)
            lead = {1: {2: 1, 0: 0}, 2: {2: 1, 3: 0, 0: 1, 1: 0}, 3: {2: 0, 0: 1}, 4: {2: 1, 1: 0}, 5: {2: 1, 3: 0}, 6: {3: 1, 1: 0}}.get(pa, {}).get(it)
            if lead is not None and i > 4:
                self.lead(lead)
            todo = list(bg.get(i, []))
            assert len(todo) <= 7

            def slot(n):
                if len(todo) >= n:
                    todo.pop(0)()

            if qk:
                g.lwait(vr(KA, 4), vr(KB, 4), vr(V[3], 4))
                M0(nxt, vr(NM, 16))
                if rk:
                    RKA(i + 2)
                if i + 1 == SPLIT:
                    self.a_rk(8, (0, 1))
            slot(1)
            E(0, 3)
            if i not in (0, SPLIT):
                g.lwait(vr(V[3], 4))
                SM(3, nxt)
            RV(3, i)
            slot(6)
            E(3, 6)
            if qk:
                M1(nxt, vr(NM, 16))
                if rk:
                    RKB(i + 2)
                if i + 1 == SPLIT:
                    self.a_rk(7)
            slot(1)
            E(6, 10)
            g.lwait(vr(V[0], 4), vr(K4, 2))
            SM(0, cur)
            if rv:
                RV(0, i + 1)
            slot(4)
            E(10, 14)
            if qk:
                B2(nxt)
                if rk:
                    RK4(i + 2)
                if i + 1 == SPLIT:
                    self.a_rk(8, (2,))
            slot(1)
            E(14, 22)
            g.lwait(vr(V[1], 4), vr(V[2], 4))
            SM(1, cur)
            if rv:
                RV(1, i + 1)
            slot(1)
            E(22, 26)
            SM(2, cur)
            if rv:
                RV(2, i + 1)
            slot(1)
            assert not todo
            E(26, 32)
            if last:
                g.lwait(vr(V[3], 4))
                g("s_nop 0")
                SM(3, cur)
            if i + 1 == SPLIT:
                self.attnA(lambda: (RKA(SPLIT + 1), RKB(SPLIT + 1), RV(0, SPLIT), RK4(SPLIT + 1), RV(1, SPLIT), RV(2, SPLIT)))
        self.stamp('attnB_end')
        g("s_nop 11")
        self.finish_o(O, VOB, VOB4, True)

        main = self.g
        self.g = g = Gen()
        g.nlab = 5000
        g("L_fallback:")
        g(f"s_mov_b32 s{S_QS}, 8\ns_mov_b32 s{S_PASS}, 1\nv_mov_b32 v1, {NBIG}\ns_waitcnt vmcnt(0) lgkmcnt(0)\ns_barrier")
        self.setup_masks()
        for c in range(8):
            self.kvb_chunk(c, "x")
            g("s_waitcnt vmcnt(0)\ns_barrier")
            for it in range(4):
                i = 4 * c + it
                RKA(i), RKB(i), RK4(i)
                g("s_waitcnt lgkmcnt(0)")
                M0(S[0], "0"), M1(S[0], "0")
                g("s_nop 9")
                B2(S[0])
                g("s_nop 15\ns_nop 3")
                rowmax(S[0], 32, 1, False)
            g("s_barrier")
        self.kvb_chunk(0, "x")
        self.kvb_chunk(1, "x")
        self.kvb_chunk(2, "x")
        g("s_waitcnt vmcnt(0)\ns_barrier")
        RKA(0), RKB(0), RK4(0)
        g(f"v_mov_b32 {vr(Z)}, 0x3f803f80")
        for r in (1, 3, 5, 6, 7):
            g(f"v_mov_b32 {vr(Z+r)}, 0")
        g("s_waitcnt lgkmcnt(0)")
        M0(S[0], "0"), M1(S[0], "0")
        g("s_nop 9")
        B2(S[0])
        g(f"v_mfma_f32_32x32x8_bf16 {vr(O,16)}, {vr(Z,2)}, {vr(Z+6,2)}, 0")
        RKA(1), RKB(1), RV(0, 0), RV(1, 0), RV(2, 0), RK4(1)
        g("s_waitcnt lgkmcnt(0)\ns_nop 15\ns_branch L_attnB_main")
        self.fallback = g
        self.g = main

    def lead(self, upper):
        g = self.g
        lab = g.label("Lp")
        g(f"s_cmp_ge_u32 s{S_W}, 4\ns_setprio {int(upper)}\ns_cbranch_scc1 {lab}\ns_setprio {1 - int(upper)}\n{lab}:")

    def attnB_barrier(self, c):
        g = self.g
        if c in (3, 5):
            self.poll(WS_F2 if c == 3 else WS_F3)
        F3AT = self.opt.get("f3at", 3)
        if c == 1:
            g.emit("s_waitcnt vmcnt(0)")
        elif c == F3AT:
            g.vwait(f"ring{c+1}", "sent", "rps")
        elif c == 5:
            g.vwait("ring6", "kva_ld", vr(QA16, 4), vr(QA4, 2))
        elif c == 6:
            g.vwait("ring7", "w89")
        elif c == 7:
            g.lwait(vr(W89, 40))
        else:
            g.vwait(f"ring{c+1}")
        g("s_barrier")
        if self.opt.get("fine2"):
            self.stamp(f"B{c}")
        if c in (1, F3AT):
            lab = g.label("Lf2")
            g(f"s_cmp_eq_u32 s{S_W}, 0\ns_cbranch_scc0 {lab}")
            g(f"s_lshl_b32 s{S_T0}, s2, 2\ns_add_u32 s{S_T0}, s{S_T0}, {WS_F2 if c == 1 else WS_F3}\nv_mov_b32 v1, s{S_T0}")
            g.emit(f"buffer_store_dword {vr(V_TAG)}, v1, {sr(SRD_WS,4)}, 0 offen sc1", cls="extra")
            if c != 1:
                g(f"s_cmp_eq_u32 s2, 0\ns_cbranch_scc0 {lab}\nv_mov_b32 v1, {WS_EPOCH}")
                g.emit(f"buffer_store_dword {vr(V_TAG)}, v1, {sr(SRD_WS,4)}, 0 offen sc1", cls="extra")
            g(f"{lab}:")
        if c == 5:
            g(f"""
            v_min_u32 v1, 23, v0
            v_mul_u32_u24 v2, {KPITCH}, v1
            v_cmp_lt_u32 s[{S_M2}:{S_M2+1}], 11, v1
            v_add_u32 v2, {L_KVA + 256}, v2
            v_add_u32 v3, {KHEAD - 12*KPITCH}, v2
            v_cndmask_b32 v1, v2, v3, s[{S_M2}:{S_M2+1}]
            v_mov_b32 v2, 0x3f803f80
            v_mov_b32 v3, 0x3f803f80
            ds_write_b64 v1, v[2:3]
            """)

    def attnB_background(self):
        g = self.g
        bg = {}

        def put(i, ops, per=1):
            for n, op in enumerate(ops):
                bg.setdefault(i + n // per, []).append(op)

        def sent(n):
            vm, w = ((VOB, 4), (VOB4, 2), (VOA, 4), (VOA4, 2))[n]
            return lambda: g.emit(f"buffer_store_dwordx{w} {vr(SENT,w)}, {vr(vm)}, {sr(SRD_WS,4)}, 0 offen sc1", tag="sent")

        def poll_issue(base):
            g(f"s_mul_i32 s{S_WOG}, s{S_HG}, 102400\ns_add_u32 s{S_WOG}, s{S_WOG}, s{S_WK}\ns_add_u32 s{S_WOG}, s{S_WOG}, {WS_WO}")
            self.poll_issue(base)

        def kva(i):
            def op():
                if i == 0:
                    g(f"""
                    s_lshr_b32 s{S_KG}, s{S_W}, 2
                    s_mul_i32 s{S_KL}, s{S_KG}, {KHEAD}
                    s_add_u32 s{S_KL}, s{S_KL}, s{S_UK}
                    s_lshl_b32 s{S_T1}, s{S_HP}, 1
                    s_add_u32 s{S_KG}, s{S_KG}, s{S_T1}
                    s_lshl_b32 s{S_KG}, s{S_KG}, 4
                    s_add_u32 s{S_KG}, s{S_KG}, s{S_RBA}
                    s_mul_i32 s{S_KG}, s{S_KG}, {4*KPITCH}
                    s_add_u32 s{S_KG}, s{S_KG}, s{S_UK}
                    """)
                lab = None
                if i == 8:
                    lab = g.label("Lka")
                    g(f"s_cmp_lt_u32 s{S_U}, 2\ns_cbranch_scc0 {lab}")
                g(f"s_add_u32 m0, s{S_KL}, {L_KVA + i*4096}\ns_add_u32 s{S_SOFF}, s{S_KG}, {WS_KVA - 8*KPITCH + i*4096}")
                g.emit(f"buffer_load_dwordx4 {vr(VL16)}, {sr(SRD_WS,4)}, s{S_SOFF} offen sc1 lds", tag="kva_ld", cls="extra" if lab else None)
                if lab:
                    g(f"{lab}:")
            return op

        def qload():
            g(f"""
            s_and_b32 s{S_T0}, s{S_W}, 1
            s_lshl_b32 s{S_T1}, s{S_HP}, 1
            s_add_u32 s{S_T0}, s{S_T0}, s{S_T1}
            s_lshl_b32 s{S_T0}, s{S_T0}, 4
            s_add_u32 s{S_T0}, s{S_T0}, s{S_RBA}
            s_lshl_b32 s{S_T0}, s{S_T0}, 2
            s_add_u32 s{S_T0}, s{S_T0}, s{S_Q}
            s_mul_i32 s{S_T0}, s{S_T0}, 1280
            s_add_u32 s{S_T0}, s{S_T0}, {WS_QA}
            v_lshlrev_b32 v1, 3, v0
            v_mov_b32 v2, {OOB}
            v_cndmask_b32 v2, v1, v2, s[{S_UP}:{S_UP+1}]
            """)
            g.emit(f"buffer_load_dwordx2 {vr(QA16,2)}, v1, {sr(SRD_WS,4)}, s{S_T0} offen sc1")
            g.emit(f"buffer_load_dwordx2 {vr(QA16+2,2)}, v1, {sr(SRD_WS,4)}, s{S_T0} offen offset:512 sc1")
            g.emit(f"buffer_load_dwordx2 {vr(QA4,2)}, v2, {sr(SRD_WS,4)}, s{S_T0} offen offset:1024 sc1")

        def touch_woa():
            lab = g.label("Ltw")
            g(f"""
            s_cmp_lt_u32 s{S_W}, 2
            s_cbranch_scc0 {lab}
            s_lshl_b32 s{S_T0}, s{S_W}, 6
            v_add_u32 v1, s{S_T0}, v0
            v_min_u32 v1, 99, v1
            v_lshlrev_b32 v1, 7, v1
            s_and_b32 s{S_T0}, s{S_RBB}, 7
            s_mul_i32 s{S_T0}, s{S_T0}, 12800
            s_mul_i32 s{S_T1}, s{S_HG}, 102400
            s_add_u32 s{S_T0}, s{S_T0}, s{S_T1}
            s_add_u32 s{S_T0}, s{S_T0}, {WS_WO}
            """)
            g.emit(f"buffer_load_dword {vr(VPOLL)}, v1, {sr(SRD_WS,4)}, s{S_T0} offen sc1", cls="extra")
            g(f"{lab}:")

        for c in range(1, 6):
            put(4 * c + 2, [lambda c=c, n=n: self.kvb_piece(c + 2, n, f"ring{c+2}") for n in range(3)], 2 if c in (1, 5) else 1)
        qn, qg, qp = self.opt.get("qnow", 0), self.opt.get("qgrp", 4), self.opt.get("qper", 1)
        put(0, [lambda n=n: self.qkv_stores(range(n, min(n + qg, 16))) for n in range(qn, 16, qg)], qp)
        put(7, [lambda: self.repack_load(0), lambda: self.repack_load(1)])
        put(self.opt.get('sentat', 8), [sent(n) for n in range(4)], self.opt.get('sentper', 2))
        put(self.opt.get('rpst', 11), [self.repack_store])
        put(self.opt.get('f2poll', 12), [lambda: poll_issue(WS_F2)])
        put(14, [kva(i) for i in range(9)] + [qload], 3)
        put(self.opt.get('f3poll', 20), [lambda: poll_issue(WS_F3)])
        put(22, self.wo_ops(0, 8, 2, L_TAIL, "w89"), 2)
        put(25, [touch_woa])
        blk = {8: L_TAIL, 9: L_TAIL + 10240}
        ofa = [lambda k=k: self.of_loads(WS_OA, OFA, only=[k]) for k in range(10)]
        put(26, self.wo_ops(1, 0, 7, L_KVA, "woa") + self.wo_ops(1, 9, 1, RING[2], "woa") + ofa[:5], 4)
        put(26, [lambda n=n: self.w_reads(blk, 8 + n // 5, n % 5, W89 + 20 * (n // 5)) for n in range(10)], 3)
        if self.opt.get("inloop"):
            put(30, self.wo_ops(1, 7, 2, L_TAIL, "woa") + ofa[5:] + self.wo_ops(0, 0, 1, RING[2] + 10240, "wob_e") + self.wo_ops(0, 1, 2, RING[0], "wob_e"), 7)
        else:
            put(30, self.wo_ops(1, 7, 2, L_TAIL, "woa") + ofa[5:], 4)
        return bg

    def attnA_setup(self):
        g = self.g
        AK, AK4 = AKA, AK4A
        g(f"""
        s_and_b32 s{S_T1}, s{S_W}, 1
        s_mul_i32 s{S_T1}, s{S_T1}, {KHEAD}
        s_mul_i32 s{S_T3}, s{S_Q}, {KPITCH}
        s_add_u32 s{S_T1}, s{S_T1}, s{S_T3}
        s_add_u32 s{S_T1}, s{S_T1}, {L_KVA}
        s_lshl_b32 s{S_T3}, s{S_RBA}, 2
        s_add_u32 s{S_T2}, s{S_Q}, s{S_T3}
        s_min_u32 s{S_T2}, s{S_T2}, 8
        s_sub_u32 s{S_TSTART}, 8, s{S_T2}
        v_and_b32 v1, 31, v0
        v_lshlrev_b32 v1, 3, v1
        v_add_u32 v1, s{S_T1}, v1
        v_lshrrev_b32 v3, 5, v0
        v_mul_u32_u24 {vr(AK)}, 288, v3
        v_add_u32 {vr(AK)}, {vr(AK)}, v1
        s_add_u32 s{S_T2}, s{S_T1}, 256
        v_add_u32 v1, {4*288}, v1
        v_mov_b32 v30, s{S_T2}
        v_cndmask_b32 {vr(AK4)}, v1, v30, s[{S_UP}:{S_UP+1}]
        v_bfe_u32 v1, v0, 4, 1
        v_and_b32 v2, 3, v0
        v_lshl_add_u32 v1, v1, 2, v2
        v_cmp_lt_u32 s[{S_M2}:{S_M2+1}], 4, v1
        v_mul_u32_u24 v1, 288, v1
        v_bfe_u32 v2, v0, 2, 2
        v_lshl_add_u32 v2, v3, 3, v2
        v_lshl_add_u32 v1, v2, 3, v1
        s_add_u32 s{S_T1}, s{S_T1}, {5*288}
        v_add_u32 v1, s{S_T1}, v1
        v_cndmask_b32 {vr(AVA[0])}, v1, v30, s[{S_M2}:{S_M2+1}]
        """)
        for n, off in ((1, 32), (2, 128), (3, 160)):
            g(f"v_add_u32 v2, {off}, v1\nv_cndmask_b32 {vr(AVA[n])}, v2, v30, s[{S_M2}:{S_M2+1}]")

    def a_rk(self, t, only=(0, 1, 2)):
        g = self.g
        kr, k4 = (160, 164)[t % 2], (168, 170)[t % 2]
        for n, (d, a, off) in enumerate(((kr, AKA, 0), (kr + 2, AKA, 576), (k4, AK4A, 0))):
            if n in only:
                g(f"ds_read_b64 {vr(d,2)}, {vr(a)} offset:{t*KPITCH+off}")

    def attnA(self, resume):
        g = self.g
        S = [96, 112]
        O, KR, K4R, VR_, M = 192, [160, 164], [168, 170], [172, 180], 208
        self.stamp('attnA_start')

        RK = self.a_rk

        def RV(t, only=None):
            p = t % 2
            for grp in range(2) if only is None else (only,):
                for tt in range(2):
                    self.g(f"ds_read_b64_tr_b16 {vr(VR_[p]+4*grp+2*tt,2)}, {vr(AVA[2*grp+tt])} offset:{t*KPITCH}")

        def M16(t):
            p = t % 2
            c = vr(MASKD, 16) if t == 8 else vr(MASKF, 16) if t == 0 else "0"
            self.g.lwait(vr(KR[p], 4), vr(K4R[p], 2))
            self.g(f"v_mfma_f32_32x32x16_bf16 {vr(S[p],16)}, {vr(KR[p],4)}, {vr(QA16,4)}, {c}")

        def X8(t):
            p = t % 2
            self.g(f"v_mfma_f32_32x32x8_bf16 {vr(S[p],16)}, {vr(K4R[p],2)}, {vr(QA4,2)}, {vr(S[p],16)}")

        def tmax(t, init):
            rest = [S[t % 2] + r for r in range(16)]
            if init:
                self.g(f"v_max3_f32 {vr(M)}, {vr(rest[0])}, {vr(rest[1])}, {vr(rest[2])}")
                rest = rest[3:]
            while len(rest) >= 2:
                self.g(f"v_max3_f32 {vr(M)}, {vr(M)}, {vr(rest[0])}, {vr(rest[1])}")
                rest = rest[2:]
            if rest:
                self.g(f"v_max_f32 {vr(M)}, {vr(M)}, {vr(rest[0])}")

        QM = 210
        M16(8), X8(8), M16(7), X8(7)
        RV(8)
        g(f"s_mov_b32 s{S_BIAS}, 0x42200000\nv_mov_b32 {vr(QM)}, 0\nv_mov_b32 {vr(QM+1)}, 0\ns_nop 1")
        g(f"v_mfma_f32_32x32x8_bf16 {vr(O,16)}, {vr(QM,2)}, {vr(QM,2)}, 0\ns_nop 1")
        tmax(8, True)
        g(f"s_cmp_gt_u32 s{S_TSTART}, 7\ns_cbranch_scc1 L_A_m")
        tmax(7, False)
        g(f"""
        L_A_m:
        v_mov_b32 v2, {vr(M)}
        v_mov_b32 {vr(QM+1)}, 0
        s_nop 0
        v_permlane32_swap_b32 {vr(M)}, v2
        s_nop 0
        v_max_f32 v2, v2, {vr(M)}
        v_add_f32 v2, s{S_BIAS}, v2
        v_cvt_pk_bf16_f32 v1, 0, -v2
        v_sub_f32 v2, -v2, v1
        v_cvt_pk_bf16_f32 v2, v1, v2
        v_cndmask_b32 {vr(QM)}, 0, v2, s[{S_UP}:{S_UP+1}]
        v_cndmask_b32 {vr(QA4)}, {vr(QA4)}, v2, s[{S_UP}:{S_UP+1}]
        s_nop 0
        """)
        for p in range(2):
            g(f"v_mfma_f32_32x32x8_bf16 {vr(S[p],16)}, {vr(K4R[p],2)}, {vr(QM,2)}, {vr(S[p],16)}")
        RK(6)
        g("s_nop 5")
        if self.opt.get("fine2"):
            self.stamp("pass1")
        main, self.g = self.g, self.fallback_a
        fb = self.g
        done = main.label("Lmaxdone")
        fb(f"L_A_fallback:\ns_waitcnt lgkmcnt(0)\ns_mov_b32 s{S_BIAS}, 0\nv_cndmask_b32 {vr(QA4)}, {vr(QA4)}, 0, s[{S_UP}:{S_UP+1}]")
        for t in list(range(8, -1, -1)) + ["done", 8, 7]:
            if t == "done":
                fb(f"{done}:")
                again = True
                continue
            first = not locals().get("again")
            if t < 8 and first:
                fb(f"s_cmp_gt_u32 s{S_TSTART}, {t}\ns_cbranch_scc1 {done}")
            RK(t)
            c = vr(MASKD, 16) if t == 8 else vr(MASKF, 16) if t == 0 else "0"
            p = t % 2
            fb(f"s_waitcnt lgkmcnt(0)\nv_mfma_f32_32x32x16_bf16 {vr(S[p],16)}, {vr(KR[p],4)}, {vr(QA16,4)}, {c}")
            fb(f"v_mfma_f32_32x32x8_bf16 {vr(S[p],16)}, {vr(K4R[p],2)}, {vr(QA4,2)}, {vr(S[p],16)}\ns_nop 11")
            if first:
                tmax(t, t == 8)
        for grp in range(2):
            for tt in range(2):
                fb(f"ds_read_b64_tr_b16 {vr(VR_[0]+4*grp+2*tt,2)}, {vr(AVA[2*grp+tt])} offset:{8*KPITCH}")
        for i in range(16):
            fb(f"v_mov_b32 {vr(O+i)}, 0")
        fb("s_waitcnt lgkmcnt(0)\ns_branch L_A_m")
        self.g = main
        stub = [g.label("Lstub"), g.label("Lstub")]
        fin, full = g.label("Lfin"), g.label("Lfull")
        g(f"s_cmp_eq_u32 s{S_TSTART}, 0\ns_cbranch_scc0 {full}")
        state = list(g.lq)
        for exits in (True, False):
            self.g = g = self.fallback_a if exits else main
            g.lq = list(state)
            if exits:
                g(f"{full}:")
            for t in range(8, -1, -1):
                p = t % 2
                E = lambda a, b: [g(f"v_exp_f32 {vr(S[p]+e)}, {vr(S[p]+e)}") for e in range(a, b)]
                SM = lambda tt, grp: g(f"v_smfmac_f32_32x32x32_bf16 {vr(O,16)}, {vr(VR_[tt%2]+4*grp,4)}, {vr(S[tt%2]+8*grp,8)}, {vr(IDX)}")
                if t < 8 and exits:
                    g(f"s_cmp_gt_u32 s{S_TSTART}, {t}\ns_cbranch_scc1 {stub[(t + 1) % 2]}")
                if self.opt.get("paltA") and t in (8, 4):
                    self.lead((t == 8) == (self.opt["paltA"] == 1))
                E(0, 3)
                if t < 8:
                    SM(t + 1, 1)
                if t > 0:
                    RV(t - 1, 0)
                E(3, 6)
                if t > 0:
                    if t < 8:
                        M16(t - 1)
                    RV(t - 1, 1)
                E(6, 9)
                if t > 0:
                    if t < 8:
                        X8(t - 1)
                    if t - 3 >= 0:
                        RK(t - 3, (0, 1))
                E(9, 13)
                g.lwait(vr(VR_[p], 8), *([vr(KR[p], 4), vr(K4R[p], 2)] if t >= 2 else []))
                SM(t, 0)
                if t - 3 >= 0:
                    RK(t - 3, (2,))
                E(13, 16)
                pad = (3 if t in (2, 1) else 0) + (0 if exits else 2) - 2
                if t > 0 and pad > 0:
                    g(f"s_nop {pad - 1}")
            if exits:
                g(f"s_nop 1\ns_branch {stub[0]}\n{stub[1]}:")
                g(f"v_smfmac_f32_32x32x32_bf16 {vr(O,16)}, {vr(VR_[1]+4,4)}, {vr(S[1]+8,8)}, {vr(IDX)}")
                g(f"s_branch {fin}")
        g(f"s_nop 1\n{stub[0]}:")
        g(f"v_smfmac_f32_32x32x32_bf16 {vr(O,16)}, {vr(VR_[0]+4,4)}, {vr(S[0]+8,8)}, {vr(IDX)}")
        g(f"{fin}:\ns_waitcnt lgkmcnt(0)")
        resume()
        g("s_nop 4")
        if self.opt.get("fine2"):
            self.stamp("pass2")
        self.finish_o(O, VOA, VOA4, "A")
        self.stamp('attnA_end')

    def of_addr(self):
        g = self.g
        g(f"""
        s_and_b32 s{S_T0}, s{S_W}, 3
        s_lshr_b32 s{S_T1}, s{S_T0}, 1
        s_lshl_b32 s{S_T2}, s{S_RBB}, 1
        s_add_u32 s{S_T1}, s{S_T1}, s{S_T2}
        s_mul_i32 s{S_T1}, s{S_T1}, 40960
        s_and_b32 s{S_T0}, s{S_T0}, 1
        s_lshl_b32 s{S_T0}, s{S_T0}, 8
        s_add_u32 s{S_T1}, s{S_T1}, s{S_T0}
        s_lshr_b32 s{S_T0}, s{S_W}, 2
        s_mul_i32 s{S_T0}, s{S_T0}, 20480
        s_add_u32 s{S_T1}, s{S_T1}, s{S_T0}
        v_lshrrev_b32 v1, 4, v0
        v_lshlrev_b32 v1, 9, v1
        v_and_b32 v2, 15, v0
        v_lshl_add_u32 v1, v2, 4, v1
        v_add_u32 {vr(VOF)}, s{S_T1}, v1
        """)

    def of_loads(self, base, OF, raw=False, only=range(10)):
        g = self.g
        for ks in only:
            if ks % 2 == 0 or ks == only[0]:
                g(f"s_mov_b32 s{S_SOFF}, {base + ks//2*4096}")
            t = f"buffer_load_dwordx4 {vr(OF[ks],4)}, {vr(VOF)}, {sr(SRD_WS,4)}, s{S_SOFF} offen offset:{(ks%2)*2048} sc1"
            if raw:
                g.lines.append("    " + t)
            else:
                g.emit(t)

    def of_check(self, base, OF, ks, part=None):
        g = self.g
        r = OF[ks]
        test = [f"v_max3_u32 v1, {vr(r)}, {vr(r+1)}, {vr(r+2)}", f"v_max_u32 v1, v1, {vr(r+3)}", "v_cmp_eq_u32 vcc, -1, v1"]
        if part in (None, 0):
            g.vwait(vr(r, 4))
        if part is None:
            g("\n".join(test) + "\ns_nop 0")
        elif part < 3:
            g(test[part])
            return
        again, retry = g.label("Lofok"), g.label("Lofretry")
        g(f"s_cbranch_vccnz {retry}\n{again}:")
        main, self.g = self.g, self.fallback
        self.g(f"{retry}:\ns_sub_u32 s{S_SPIN}, s{S_SPIN}, 1\ns_cbranch_scc1 L_end\ns_waitcnt vmcnt(0)")
        self.of_loads(base, OF, raw=True, only=list(range(ks, 10)))
        self.g("s_waitcnt vmcnt(0)\n" + "\n".join(test) + f"\ns_nop 0\ns_cbranch_vccnz {retry}\ns_branch {again}")
        self.g = main

    def w_reads(self, blocks, ks, nt, dst):
        off = blocks[ks] + nt * 1024
        ww = off // 65536
        self.g(f"ds_read_b128 {vr(dst+4*nt,4)}, {vr(AWO[ww])} offset:{off - ww*65536}")

    def tail_setup(self):
        self.g(f"""
        s_lshr_b32 s{S_T0}, s{S_W}, 2
        s_mul_i32 s{S_T0}, s{S_T0}, 5120
        v_add_u32 {vr(AWO[0])}, s{S_T0}, {vr(VL16)}
        v_add_u32 {vr(AWO[1])}, 0x10000, {vr(AWO[0])}
        v_add_u32 {vr(AWO[2])}, 0x20000, {vr(AWO[0])}
        s_mul_i32 s{S_T0}, s{S_U}, 5120
        s_add_u32 s{S_T0}, s{S_T0}, {L_KVA}
        v_add_u32 {vr(VRED)}, s{S_T0}, {vr(VL16)}
        s_lshl_b32 s{S_T1}, s{S_RBB}, 6
        s_lshl_b32 s{S_T2}, s{S_U}, 4
        s_add_u32 s{S_T1}, s{S_T1}, s{S_T2}
        v_and_b32 v2, 15, v0
        v_add_u32 v2, s{S_T1}, v2
        v_mul_u32_u24 v2, 2560, v2
        v_lshrrev_b32 v3, 4, v0
        v_lshl_add_u32 v2, v3, 3, v2
        s_mul_i32 s{S_T1}, s{S_HG}, 160
        v_add_u32 {vr(VOUT)}, s{S_T1}, v2
        v_and_b32 v1, 1, v3
        v_mul_u32_u24 v1, 24, v1
        v_add_u32 {vr(VOUT4)}, v1, {vr(VOUT)}
        """)

    def tail(self):
        g = self.g
        o = self.opt
        blocks = [L_KVA + 10240 * i for i in range(7)] + [L_TAIL, L_TAIL + 10240, RING[2]]
        blocks += [RING[2] + 10240, RING[0], RING[0] + 10240, RING[1], RING[1] + 10240, L_KVA, L_KVA + 10240, L_KVA + 20480]
        buf = [64, 84] * 9 + [W89, W89 + 20]
        read_in = {k - 1: k for k in range(1, 18)}
        OF, ACC, SCR = OFA + OFB, (104, 124), (30720, 51200)
        first = self.wo_ops(0, 0, 1, RING[2] + 10240, "wob_e") + self.wo_ops(0, 1, 2, RING[0], "wob_e")
        if o.get("inloop"):
            first = []
        early = self.wo_ops(0, 3, 2, RING[1], "wob_m")
        late = self.wo_ops(0, 5, 3, L_KVA, "wob")
        ofl = [lambda k=k: self.of_loads(WS_OB, OFB, only=[k]) for k in range(10)]
        bg = {}
        seq = (first + ofl[:3] + early + ofl[3:6] + late + ofl[6:], first + early + ofl[:5] + late + ofl[5:], first + early + late + ofl)[o.get("tseq", 2)]
        for n, op in enumerate(seq):
            st = o.get("t0", 2) + n // o.get("tper", 2)
            assert op not in late or st >= 3
            bg.setdefault(st, []).append(op)
        RT = (12, 64)

        def roles(fn):
            hi, join = g.label("Lhi"), g.label("Ljoin")
            g(f"s_cmp_ge_u32 s{S_W}, 4\ns_cbranch_scc1 {hi}")
            saved = (list(g.lq), list(g.vq))
            fn(0)
            g(f"s_branch {join}\n{hi}:")
            g.lq, g.vq = list(saved[0]), list(saved[1])
            fn(1)
            g(f"{join}:")

        def red_write(m):
            def fn(kh):
                for i, nt in reversed(list(enumerate(((3, 4), (0, 1, 2))[kh]))):
                    t = f"ds_write_b128 {vr(VRED)}, {vr(ACC[m]+4*nt,4)} offset:{SCR[m]+2048*kh+1024*i}"
                    g.lines.append("    " + t) if i == 2 else g.emit(t, tag="redw")
            roles(fn)

        def red_read(m):
            def fn(kh):
                for i, nt in reversed(list(enumerate(((0, 1, 2), (3, 4))[kh]))):
                    t = f"ds_read_b128 {vr(RT[m]+4*i,4)}, {vr(VRED)} offset:{SCR[m]+2048*(1-kh)+1024*i}"
                    g.lines.append("    " + t) if i == 2 else g.emit(t)
            roles(fn)

        def red_finish(m):
            so = f"s{S_T5}" if m == 1 else "0"
            fl = ("", " sc1", " nt", " sc0 sc1")[o.get(f"ofl{m}", 0)]
            g.lwait(vr(RT[m], 8))

            def fn(kh):
                keep = ((0, 1, 2), (3, 4))[kh]
                for i, nt in enumerate(keep):
                    t = RT[m] + 4 * i
                    g(f"v_pk_add_f32 {vr(t,2)}, {vr(t,2)}, {vr(ACC[m]+4*nt,2)}\nv_pk_add_f32 {vr(t+2,2)}, {vr(t+2,2)}, {vr(ACC[m]+4*nt+2,2)}")
                for i, nt in enumerate(keep):
                    t, d = RT[m] + 4 * i, RT[m] + (0, 2, 8)[i]
                    g(f"v_cvt_pk_bf16_f32 {vr(d)}, {vr(t)}, {vr(t+1)}\nv_cvt_pk_bf16_f32 {vr(d+1)}, {vr(t+2)}, {vr(t+3)}")
                t = RT[m]
                if kh == 0:
                    g.emit(f"buffer_store_dwordx2 {vr(t+8,2)}, {vr(VOUT)}, {sr(SRD_OUT,4)}, {so} offen offset:64{fl}", cls="extra")
                g(f"s_nop {1 - (kh == 0)}\nv_permlane16_swap_b32 {vr(t)}, {vr(t+2)}\nv_permlane16_swap_b32 {vr(t+1)}, {vr(t+3)}")
                g.emit(f"buffer_store_dwordx4 {vr(t,4)}, {vr(VOUT4)}, {sr(SRD_OUT,4)}, {so} offen offset:{96*kh}{fl}", cls="extra")
            roles(fn)

        g(f"s_movk_i32 s{S_T5}, 1280")
        g.vwait("woa")
        g.emit("s_waitcnt lgkmcnt(0)")
        g("s_barrier")
        self.stamp('tail_start')
        g(f"v_mov_b32 v1, {L_FLAG}\nds_read_b32 v3, v1")
        for nt in range(5):
            self.w_reads(blocks, 0, nt, buf[0])
        g.lwait("v3")
        g(f"v_readfirstlane_b32 s{S_T0}, v3\ns_nop 0\ns_cmp_lg_u32 s{S_T0}, s{S_PASS}\ns_cbranch_scc1 L_fallback")
        self.of_check(WS_OA, OFA, 0)
        for st in range(20):
            acc = ACC[st // 10]
            if st == 3:
                g("s_barrier")
            if st == 9:
                g.vwait("wob_e")
                g("s_barrier")
            if st == 10:
                self.stamp('outA_end')
            if st == 11:
                red_write(0)
            if st == 12:
                g.vwait("wob_m")
                g("s_barrier")
            if st == 14:
                g.vwait("wob")
                g.lwait("redw")
                g("s_barrier")
                red_read(0)
            if st == 16:
                red_finish(0)
            if o.get("fine2") and st in (3, 6, 9, 12, 14, 17):
                self.stamp(f"s{st}")
            todo = list(bg.get(st, []))
            for nt in range(5):
                g.lwait(vr(buf[st] + 4 * nt, 4))
                g(f"v_mfma_f32_16x16x32_bf16 {vr(acc+4*nt,4)}, {vr(buf[st]+4*nt,4)}, {vr(OF[st],4)}, {'0' if st % 10 == 0 else vr(acc+4*nt,4)}")
                if st in read_in:
                    self.w_reads(blocks, read_in[st], nt, buf[read_in[st]])
                if nt >= 1 and st < 19:
                    self.of_check(WS_OA if st < 9 else WS_OB, OFA if st < 9 else OFB, (st + 1) % 10, nt - 1)
                if nt < 4 and todo:
                    todo.pop(0)()
            assert not todo
        self.stamp('mm_end')
        g("s_nop 5")
        red_write(1)
        g.emit("s_waitcnt lgkmcnt(0)")
        g("s_barrier")
        red_read(1)
        red_finish(1)
        self.stamp('end')

    def build(self):
        g = self.g
        self.prologue()
        self.win = {r: 0 for r in range(64, 84)}
        self.order = "BA"
        self.loader_head()
        g(f"s_cmp_eq_u32 s{S_W}, 7\ns_cbranch_scc0 L_ldB_N\ns_cmp_eq_u32 s{S_ISV}, 0\ns_cbranch_scc0 L_ldB_V")
        st = (list(g.lq), list(g.vq), dict(self.win))
        for kind in "KVN":
            g.lq, g.vq, self.win = list(st[0]), list(st[1]), dict(st[2])
            if kind != "K":
                g(f"L_ldB_{kind}:")
            self.loaderB(kind)
            if kind != "N":
                g("s_branch L_ldA")
        g("L_ldA:")
        self.loader_second()
        if self.opt.get("dual"):
            g("s_branch L_attnB")
            g("L_ld_AB:")
            g.lq, g.vq, self.order = [], [], "AB"
            self.loader_head()
            self.loader_first_A()
            self.loader_second()
        self.cons = self.g = Gen()
        self.g.nlab = 8000
        self.win = {r: 0 for r in range(64, 84)}
        self.consumer()
        self.g("s_branch L_attnB")
        self.g = g
        g("L_attnB:")
        g.lq = []
        g.vq = [(q, "extra") for q, c in self.cons.vq]
        self.attnB()
        self.tail()
        if self.opt.get("stamps"):
            g("L_stamps:")
            g.lines.append("    s_memrealtime s[98:99]")
            g(f"""
            s_waitcnt lgkmcnt(0)
            v_writelane_b32 v255, s94, 60
            v_writelane_b32 v255, s96, 61
            v_writelane_b32 v255, s98, 62
            v_writelane_b32 v255, s{S_SPIN}, 63
            s_lshl_b32 s{S_T0}, s2, 3
            s_add_u32 s{S_T0}, s{S_T0}, s{S_W}
            s_lshl_b32 s{S_T0}, s{S_T0}, 8
            s_add_u32 s{S_T0}, s{S_T0}, {WS_STAMP}
            v_lshlrev_b32 v1, 2, v0
            v_add_u32 v1, s{S_T0}, v1
            buffer_store_dword v255, v1, {sr(SRD_WS,4)}, 0 offen
            """)
        g("L_end:\ns_endpgm")
        lines = g.lines + self.cons.lines + self.fallback.lines + self.fallback_a.lines
        probs = check_hazards(lines)
        for p in probs:
            print("HAZARD", p, file=sys.stderr)
        head = open(f"cdna_kernels/{NAME}.s.ref").read().split("; Override launch")[0]
        out = head + f"; @launch grid=(256,1,1) block=(512,1,1) lds={LDS_BYTES}\n"
        out += f""".amdgcn_target "amdgcn-amd-amdhsa--gfx950"
.text
.globl {NAME}_kernel
.p2align 8
.type {NAME}_kernel,@function
{NAME}_kernel:
"""
        if self.opt.get("stamps"):
            out = out.replace("; @launch", "; STAMPS " + repr((self.opt["stamps"], self.names)) + "\n; @launch")
        out += "\n".join(lines) + "\n"
        out += f""".section .rodata,"a"
.p2align 6
.amdhsa_kernel {NAME}_kernel
  .amdhsa_next_free_vgpr 256
  .amdhsa_next_free_sgpr 102
  .amdhsa_accum_offset 256
  .amdhsa_group_segment_fixed_size 0
  .amdhsa_kernarg_size 88
  .amdhsa_user_sgpr_count 2
  .amdhsa_user_sgpr_kernarg_segment_ptr 1
  .amdhsa_system_sgpr_workgroup_id_x 1
.end_amdhsa_kernel
"""
        return out, probs


if __name__ == "__main__":
    opt = {}
    path = f"cdna_kernels/{NAME}.s"
    for a in sys.argv[1:]:
        if a.startswith("-o"):
            path = a[2:]
        else:
            k, _, v = a.partition("=")
            opt[k] = int(v) if v else 1
    text, probs = K(opt).build()
    open(path, "w").write(text)
    print("wrote", path, len(text), "bytes;", len(probs), "hazards")
```
